```python
import torch

def _softmax(x, axis=-1):
    return torch.softmax(x, dim=axis)
def _gelu(x):
    return torch.nn.functional.gelu(x, approximate="tanh")
def _silu(x):
    return torch.nn.functional.silu(x)
def _sigmoid(x):
    return torch.sigmoid(x)
def _layernorm(x, axis=-1, eps=1e-5):
    m = x.mean(dim=axis, keepdim=True)
    v = x.var(dim=axis, keepdim=True, unbiased=False)
    return (x - m) / torch.sqrt(v + eps)
def _scatter_add(tgt, idx, src, axis=0):
    return tgt.clone().index_add_(axis, idx, src)
def _segment_sum(src, seg, n):
    out = torch.zeros((n,) + src.shape[1:], dtype=src.dtype)
    return out.index_add_(0, seg, src)
def _pad(x, pw):
    flat = tuple(v for pair in reversed(pw) for v in pair)
    return torch.nn.functional.pad(x, flat)

kernel_name = 'standalone__gqa_softmax__near_ridge'

def setup_inputs():

    _w = (lambda a: (lambda t: t.to(torch.bfloat16) if t.is_floating_point() else t)(torch.as_tensor(a)))
    B, Hq, Hkv, Sq, Sk, D = 8, 32, 8, 160, 1024, 128
    return {
        "q": _w((lambda *s: torch.randn(*s, dtype=torch.bfloat16) * 0.8)(B, Hq, Sq, D)),
        "k": _w((lambda *s: torch.randn(*s, dtype=torch.bfloat16) * 0.8)(B, Hkv, Sk, D)),
        "v": _w((lambda *s: torch.randn(*s, dtype=torch.bfloat16) * 0.05)(B, Hkv, Sk, D)),
    }

def reference(q, k, v):
    B, Hq, Sq, D = q.shape
    Hkv = k.shape[1]
    rep = Hq // Hkv
    k = (lambda x, n, axis: torch.repeat_interleave(x, n, dim=axis))(k, rep, axis=1)
    v = (lambda x, n, axis: torch.repeat_interleave(x, n, dim=axis))(v, rep, axis=1)
    scale = D ** -0.5
    scores = torch.einsum("bhqd,bhkd->bhqk", q, k) * scale
    p = _softmax(scores, axis=-1)
    return torch.einsum("bhqk,bhkd->bhqd", p, v)
```

```python
import struct, math
def f32bits(x): return struct.unpack("<I", struct.pack("<f", x))[0]
C_SCALE = f32bits(math.log2(math.e) / math.sqrt(128.0))

KNAME = "standalone__gqa_softmax__near_ridge_kernel"
HEADER = """; Kernarg layout for this problem (48 bytes, ptrs only, base s[0:1]):
"""
class Em:
    def __init__(self):
        self.lines = []
    def __call__(self, s):
        for l in s.split("\n"):
            l = l.strip()
            if l: self.lines.append(l)
    def c(self, s): self.lines.append("; " + s)
    def label(self, s): self.lines.append(s + ":")
    def text(self):
        out = []
        for l in self.lines:
            if l.endswith(":") or l.startswith(";") or l.startswith("."): out.append(l)
            else: out.append("    " + l)
        return "\n".join(out)
def vr(b, n=1): return f"v{b}" if n == 1 else f"v[{b}:{b+n-1}]"
def ar(b, n=1): return f"a{b}" if n == 1 else f"a[{b}:{b+n-1}]"
def sr(b, n=1): return f"s{b}" if n == 1 else f"s[{b}:{b+n-1}]"
```

```python
import sys, argparse
from common import *

sQ, sK, sV, sO = 4, 8, 12, 16
sW, sRG, sKH, sW4K, sSOFF, sPASS = 20, 21, 22, 23, 24, 26
sMK, sMV = 28, 32
sMKC, sMVN, sDUM = 36, 37, 38
sT = 48
KADDR, VADDR, DVO, ONES, L, VLANE = 8, 12, 20, 24, 28, 33
S, P, Q, OK = 36, 52, 64, 144
TMP = 224
OS, KF, VF, LZ = 0, 80, 144, 208
KRING, VRING, QB, DUMMY = 0, 65536, 122880, 131072
XCH, LXCH, TRN, FLG = 0, 81920, 98304, 147456
M16 = "v_mfma_f32_16x16x32_bf16"

def oacc(qt, dtp):
    if dtp < 4: return vr(OK + (qt*4+dtp)*4, 4)
    return ar(OS + (qt*4+dtp-4)*4, 4)

class Gen:
    def __init__(self, Z=(2,3), fast=True, dbg=0, lo=2.0**-6, hi=2.0**100):
        self.e = Em(); self.Z = set(Z); self.fast = fast; self.dbg = dbg; self.lo = lo; self.hi = hi

    def setup(self):
        e = self.e
        e(f"s_cmp_ge_u32 s2, 256\ns_cbranch_scc1 L_end")
        e("s_load_dwordx4 s[40:43], s[0:1], 0\ns_load_dwordx4 s[44:47], s[0:1], 16")
        e(f"v_lshrrev_b32 v1, 6, v0\nv_and_b32 v{VLANE}, 63, v0")
        e(f"s_and_b32 s48, s2, 7\ns_lshr_b32 s49, s2, 3")
        e(f"v_readfirstlane_b32 s{sW}, v1")
        e("s_lshl_b32 s50, s48, 5\ns_add_u32 s50, s50, s49\ns_mul_i32 s50, s50, 40960")
        e("s_lshl_b32 s51, s48, 3\ns_lshr_b32 s52, s49, 2\ns_add_u32 s51, s51, s52\ns_lshl_b32 s51, s51, 18")
        e(f"s_lshr_b32 s{sRG}, s{sW}, 1\ns_and_b32 s{sKH}, s{sW}, 1\ns_lshl_b32 s{sW4K}, s{sW}, 12")
        e(f"s_mov_b32 s{sPASS}, 0")
        e("s_waitcnt lgkmcnt(0)")
        for srd, ptr, off, n in ((sQ, 40, 50, 40960), (sK, 42, 51, 262144), (sV, 44, 51, 262144), (sO, 46, 50, 40960)):
            e(f"s_add_u32 s{srd}, s{ptr}, s{off}\ns_addc_u32 s{srd+1}, s{ptr+1}, 0\ns_and_b32 s{srd+1}, s{srd+1}, 0xffff")
            e(f"s_mov_b32 s{srd+2}, {n}\ns_mov_b32 s{srd+3}, 0x20000")
        e(f"v_and_b32 v2, 15, v{VLANE}\nv_lshrrev_b32 v3, 4, v{VLANE}")
        for ee in range(2):
            e(f"v_add_u32 v4, {4*ee}, v3\nv_lshlrev_b32 v4, 1, v4\nv_xor_b32 v4, v2, v4\nv_lshlrev_b32 v4, 4, v4")
            e(f"v_lshl_add_u32 v{DVO+ee}, v3, 8, v4")
    def addrs(self):
        e = self.e
        e(f"v_and_b32 v2, 15, v{VLANE}\nv_lshrrev_b32 v3, 4, v{VLANE}")
        e(f"s_lshl_b32 s{sT}, s{sKH}, 5")
        e(f"v_and_b32 v4, 7, v2\nv_lshlrev_b32 v4, 1, v4")
        e(f"v_add_u32 v5, s{sT}, v2\nv_lshlrev_b32 v5, 8, v5")
        for ks in range(4):
            e(f"v_add_u32 v6, {4*ks}, v3\nv_xor_b32 v6, v6, v4\nv_lshl_add_u32 v{KADDR+ks}, v6, 4, v5")
        e(f"v_lshrrev_b32 v4, 2, v2")
        e(f"v_and_b32 v5, 1, v3\nv_lshl_add_u32 v5, v5, 2, v4")
        e(f"s_lshl_b32 s{sT+1}, s{sKH}, 2\nv_xor_b32 v5, s{sT+1}, v5")
        e(f"v_lshl_add_u32 v6, v3, 2, v4\nv_add_u32 v6, s{sT}, v6\nv_lshlrev_b32 v6, 8, v6")
        e(f"v_and_b32 v7, 3, v2\nv_lshl_add_u32 v6, v7, 3, v6\nv_add_u32 v6, {VRING}, v6")
        for d in range(8):
            e(f"v_xor_b32 v7, {d}, v5\nv_lshl_add_u32 v{VADDR+d}, v7, 5, v6")
        for r in range(4): e(f"v_mov_b32 v{ONES+r}, 0x3f803f80")
        for j in range(4):
            e(f"s_add_u32 s{sMK+j}, s{sW4K}, {KRING + j*16384}\ns_add_u32 s{sMV+j}, s{sW4K}, {VRING + j*16384}")
        e(f"s_add_u32 s{sDUM}, s{sW4K}, {DUMMY}")
    def dma(self, srd, soff, i4):
        return f"buffer_load_dwordx4 v{DVO + (i4 & 1)}, s[{srd}:{srd+3}], s{soff} offen offset:{1024*i4} lds"
    def q_dma(self):
        e = self.e
        e(f"s_mul_i32 s{sT}, s{sRG}, {80*256}\ns_lshl_b32 s{sT+1}, s{sKH}, 11\ns_add_u32 s{sT}, s{sT}, s{sT+1}")
        for qt in range(5):
            e(f"s_add_u32 s{sT+2}, s{sT}, {qt*4096}\ns_add_u32 m0, s{sT+2}, {QB}\ns_nop 0")
            e(self.dma(sQ, sT+2, 0)); e(self.dma(sQ, sT+2, 1))
    def kv_dma(self, which, stage, slot, n=4):
        e = self.e
        srd = sK if which == 'k' else sV
        base = (KRING if which == 'k' else VRING) + slot*16384
        e(f"s_add_u32 s{sT+3}, s{sW4K}, {stage*16384}\ns_add_u32 m0, s{sW4K}, {base}\ns_nop 0")
        for i4 in range(n): e(self.dma(srd, sT+3, i4))
    def q_read_scale(self):
        e = self.e
        e(f"s_mul_i32 s{sT}, s{sRG}, {80*256}\ns_lshl_b32 s{sT+1}, s{sKH}, 13\ns_sub_u32 s{sT}, s{sT}, s{sT+1}\ns_add_u32 s{sT}, s{sT}, {QB}")
        for ks in range(4): e(f"v_add_u32 v{TMP+ks}, s{sT}, v{KADDR+ks}")
        for qt in range(5):
            for ks in range(4):
                e(f"ds_read_b128 {vr(Q+(qt*4+ks)*4,4)}, v{TMP+ks} offset:{qt*4096}")
        e("s_waitcnt lgkmcnt(0)")
    def q_scale(self):
        e = self.e
        e(f"s_mov_b32 s{sT}, {C_SCALE:#x}\ns_mov_b32 s{sT+1}, {C_SCALE:#x}\ns_mov_b32 s{sT+2}, 0xffff0000")
        for r in range(0, 80, 4):
            for k in range(4):
                e(f"v_lshlrev_b32 v{TMP+2*k}, 16, v{Q+r+k}\nv_and_b32 v{TMP+2*k+1}, s{sT+2}, v{Q+r+k}")
            for k in range(4):
                e(f"v_pk_mul_f32 {vr(TMP+2*k,2)}, {vr(TMP+2*k,2)}, s[{sT}:{sT+1}]")
            for k in range(4):
                e(f"v_cvt_pk_bf16_f32 v{Q+r+k}, v{TMP+2*k}, v{TMP+2*k+1}")
    def zero_acc(self):
        e = self.e
        for r in range(80): e(f"v_mov_b32 v{OK+r}, 0")
        for r in range(80): e(f"v_accvgpr_write_b32 a{OS+r}, 0")
        for r in range(20): e(f"v_accvgpr_write_b32 a{LZ+r}, 0")
        for t in range(5): e(f"v_mov_b32 v{L+t}, 0")
    def kread(self, buf, slot, n):
        kt, ks = n // 4, n % 4
        return f"ds_read_b128 {ar(KF+buf*32+n*4,4)}, v{KADDR+ks} offset:{slot*16384 + kt*4096}"
    def vread(self, buf, slot, n):
        d, h2 = n // 2, n % 2
        return f"ds_read_b64_tr_b16 {ar(VF+buf*32+d*4+2*h2,2)}, v{VADDR+d} offset:{slot*16384 + h2*4096}"
    def qk(self, tile, kbuf, sb, n, cinit=None):
        kt, ks = n // 4, n % 4
        d = vr(S + sb*8 + kt*4, 4)
        c = d if ks else (cinit if cinit else "0")
        return f"{M16} {d}, {ar(KF+kbuf*32+n*4,4)}, {vr(Q+(tile*4+ks)*4,4)}, {c}"
    def pv(self, tile, vbuf, pb, dtp):
        o = oacc(tile, dtp)
        return f"{M16} {o}, {ar(VF+vbuf*32+dtp*4,4)}, {vr(P+pb*4,4)}, {o}"
    def ones(self, tile, pb):
        o = ar(LZ+tile*4, 4)
        return f"{M16} {o}, {vr(ONES,4)}, {vr(P+pb*4,4)}, {o}"
    def ex(self, sb, k): return f"v_exp_f32 v{S+sb*8+k}, v{S+sb*8+k}"
    def add(self, tile, sb, k): return f"v_add_f32 v{L+tile}, v{L+tile}, v{S+sb*8+k}"
    def cvt(self, sb, pb, m): return f"v_cvt_pk_bf16_f32 v{P+pb*4+m}, v{S+sb*8+2*m}, v{S+sb*8+2*m+1}"

    def build_template(self):
        Z = self.Z
        slots = []
        free = []
        for j in range(5):
            gaps = []
            ms = [('qk', n) for n in range(8)] + [('pv', d) for d in range(8)]
            zt = j in Z
            if zt:
                v = {3: [('c',0)], 7: [('c',1)], 11: [('c',2)], 15: [('c',3)]}
                fr = {1:'W',3:'s',5:'W',7:'s',9:'W',11:'s',13:'W',15:'s'}
            else:
                v = {3: [('a',0),('a',1)], 5: [('c',0),('a',2)], 7: [('a',3),('c',1)], 11: [('a',4),('a',5)], 13: [('c',2),('a',6)], 15: [('a',7),('c',3)]}
                fr = {1:'W', 9:'W'}
            for g in range(16):
                fill = []
                if g % 2 == 0: fill = [('e', g//2)]
                else: fill = list(v.get(g, []))
                gaps.append(dict(m=ms[g], fill=fill, slot=j, free=fr.get(g), sh=[]))
                if g == 11 and ((j-1) % 5) in Z:
                    gaps.append(dict(m=('one',), fill=[], slot=j, free='W', sh=[]))
            slots.append(gaps)
        seq = []
        order = [(1, True)] + [(j, None) for j in (2,3,4,0)] + [(1, False)]
        for j, after in order:
            for gi, gp in enumerate(slots[j]):
                if gp['free'] is None: continue
                if after is True and gi < 8: continue
                if after is False and gi >= 8: continue
                prev = (j == 0) or (after is False)
                seq.append((gp, prev, j, gi))
        nW = sum(1 for x in seq if x[0]['free'] == 'W'); nS = len(seq) - nW
        items = [('k', n) for n in range(8)] + [('v', n) for n in range(16)]
        Wpos = [i for i, x in enumerate(seq) if x[0]['free'] == 'W']
        ndma = 8
        need_W_for_ds = max(0, (24 - nS + 1)//2)
        assert nW - ndma >= need_W_for_ds or True
        dmapos = set([Wpos[0]] + Wpos[-(ndma-1):])
        di = 0; ii = 0
        over = []
        for i, (gp, prev, j, gi) in enumerate(seq):
            if i in dmapos:
                gp['fill'] = [('d', di, prev)]; di += 1
            else:
                n = 2 if gp['free'] == 'W' else 1
                take = items[ii:ii+n]; ii += n
                gp['fill'] = [(a, b, prev) for a, b in take] + gp['fill']
                for a, b in take:
                    gp.setdefault('ds', []).append((a, b))
        if ii < len(items):
            print(f"; WARNING: {len(items)-ii} DS items overflow", file=sys.stderr)
            for i, (gp, prev, j, gi) in enumerate(seq):
                if ii >= len(items): break
                if i not in dmapos and gp['free'] == 'W' and not prev:
                    a, b = items[ii]; ii += 1
                    gp['fill'] = [(a, b, prev)] + gp['fill']
        assert di == 8 and ii >= len(items)
        return slots

    def emit_gap(self, gp, s, j, do_mfma=True, skip=()):
        e = self.e
        u = 5*s + j
        m = gp['m']
        if not do_mfma: e("s_nop 0")
        if do_mfma:
            if m[0] == 'qk':
                t = (j+1) % 5; s1 = s + (1 if j == 4 else 0)
                e(self.qk(t, s1 % 2, (u+1) % 2, m[1]))
            elif m[0] == 'pv':
                t = (j-1) % 5; s0 = s - (1 if j == 0 else 0)
                e(self.pv(t, s0 % 2, (u-1) % 2, m[1]))
            else:
                t = (j-1) % 5
                e(self.ones(t, (u-1) % 2))
        for x in gp['sh']:
            e(x(s))
        for it in gp['fill']:
            k = it[0]
            if k in skip: continue
            if k == 'e': e(self.ex(u % 2, it[1]))
            elif k == 'a': e(self.add(j, u % 2, it[1]))
            elif k == 'c': e(self.cvt(u % 2, u % 2, it[1]))
            else:
                sw = s - (1 if it[2] else 0)
                if k == 'k': e(self.kread((sw+1) % 2, (sw+1) % 4, it[1]))
                elif k == 'v': e(self.vread((sw+1) % 2, (sw+1) % 4, it[1]))
                elif k == 'd':
                    n = it[1]
                    e(self.dma(sK if n < 4 else sV, sSOFF, n % 4))

    def finish_template(self, slots):
        flat = [(j, gi, gp) for j in range(5) for gi, gp in enumerate(slots[j])]
        g7 = slots[1][7]
        g7['sh'].append(lambda s: "s_waitcnt vmcnt(16) lgkmcnt(0)\ns_barrier")
        slots[1][2]['sh'].append(lambda s: f"s_add_u32 s{sSOFF}, s{sSOFF}, 16384")
        slots[1][4]['sh'].append(lambda s: f"s_cmp_lt_u32 s{sSOFF}, 262144")
        slots[1][5]['sh'].append(lambda s: f"s_cselect_b32 s{sMKC}, s{sMK + s % 4}, s{sDUM}")
        slots[1][6]['sh'].append(lambda s: f"s_cselect_b32 s{sMVN}, s{sMV + s % 4}, s{sDUM}")
        slots[1][8]['sh'].append(lambda s: f"s_mov_b32 m0, s{sMKC}")
        order = [(1, 8, 99)] + [(j, 0, 99) for j in (2,3,4,0)] + [(1, 0, 8)]
        seq = []
        for j, a, b in order:
            for gi, gp in enumerate(slots[j]):
                if a <= gi < b: seq.append(gp)
        idx = [i for i, gp in enumerate(seq) if any(it[0] == 'd' and it[1] == 4 for it in gp['fill'])][0]
        assert not any(it[0] == 'd' for it in seq[idx-1]['fill'])
        seq[idx-1]['sh'].append(lambda s: f"s_mov_b32 m0, s{sMVN}")
        lastk = max(i for i, gp in enumerate(seq) if any(it[0] == 'k' for it in gp['fill']))
        endi = [i for i, gp in enumerate(seq) if gp is slots[3][-1]][0]
        assert lastk <= endi, "K read after deadline"
        cnt = 0
        gpk = seq[lastk]; its = gpk['fill']; lk = max(i for i, it in enumerate(its) if it[0] == 'k')
        cnt += sum(1 for it in its[lk+1:] if it[0] in 'kv')
        for gp in seq[lastk+1:endi+1]: cnt += sum(1 for it in gp['fill'] if it[0] in 'kv')
        self.kwait = min(cnt, 15)
        self.slot3_tail = f"s_waitcnt lgkmcnt({self.kwait})"
        lastv = max(i for i, gp in enumerate(seq) if any(it[0] == 'v' for it in gp['fill']))
        self.sched_info = dict(lastk=(lastk, seq[lastk]['slot']), lastv=(lastv, seq[lastv]['slot']), kwait=self.kwait)

    def emit_slot(self, slots, s, j, g0=0, g1=99, do_mfma=True, skip=(), skipm=()):
        for gi, gp in enumerate(slots[j]):
            if g0 <= gi < g1:
                self.emit_gap(gp, s, j, do_mfma=do_mfma and gp['m'][0] not in skipm, skip=skip)
        if j == 3 and g1 >= len(slots[j]): self.e(self.slot3_tail)

    def fast_path(self):
        e = self.e
        slots = self.build_template(); self.finish_template(slots); self.slots = slots
        e.c(f"schedule: {self.sched_info}")
        e.c("prologue")
        self.q_dma()
        for st in range(3):
            self.kv_dma('k', st, st); self.kv_dma('v', st, st)
        self.kv_dma('k', 3, 3)
        self.addrs()
        self.zero_acc()
        e("s_waitcnt vmcnt(28)\ns_barrier")
        self.q_read_scale()
        e("s_barrier")
        self.kv_dma('v', 3, 3, n=3)
        self.q_scale()
        e("s_waitcnt vmcnt(23)\ns_barrier")
        for n in range(8): e(self.kread(0, 0, n))
        for n in range(16): e(self.vread(0, 0, n))
        e(f"s_add_u32 s{sSOFF}, s{sW4K}, {3*16384}")
        e("s_waitcnt lgkmcnt(15)\ns_waitcnt lgkmcnt(0)")
        for n in range(8): e(self.qk(0, 0, 0, n))
        for n in range(8): e(self.qk(1, 0, 1, n))
        e("s_nop 7")
        for k in range(8): e(self.ex(0, k))
        e("s_nop 0")
        if 0 not in self.Z:
            for k in range(8): e(self.add(0, 0, k))
        for m in range(4): e(self.cvt(0, 0, m))
        e("s_nop 1")
        e("s_branch L_entry")
        e(".p2align 6")
        e.label("L_top")
        h2 = [gi for gi, gp in enumerate(slots[0]) if gp['m'][0] != 'qk'][0]
        self.emit_slot(slots, 0, 0, g0=h2)
        e.label("L_entry")
        for s in range(4):
            for j in range(5):
                if s == 0 and j == 0: continue
                if s == 3 and j == 4:
                    e(f"s_cmp_ge_u32 s{sSOFF}, {19*16384}\ns_cbranch_scc1 L_tail")
                self.emit_slot(slots, s, j)
        self.emit_slot(slots, 4, 0, g1=h2)
        e("s_branch L_top")
        e.label("L_tail")
        self.emit_slot(slots, 3, 4, skip=('k','v','d'), skipm=('qk',))
        e("s_nop 1")
        h2 = [gi for gi, gp in enumerate(slots[0]) if gp['m'][0] != 'qk'][0]
        for gp in slots[0][h2:]:
            self.emit_gap(dict(m=gp['m'], fill=[], sh=[]), 4, 0)

    def epilogue(self):
        e = self.e
        e.label("L_epi")
        e("s_nop 7\ns_nop 7")
        for t in range(5):
            if t in self.Z:
                e(f"v_accvgpr_read_b32 v{L+t}, a{LZ+4*t}")
            else:
                e(f"v_mov_b32 v1, v{L+t}\ns_nop 1\nv_permlane32_swap_b32 v1, v{L+t}\ns_nop 1\nv_add_f32 v{L+t}, v{L+t}, v1")
                e(f"v_mov_b32 v1, v{L+t}\ns_nop 1\nv_permlane16_swap_b32 v1, v{L+t}\ns_nop 1\nv_add_f32 v{L+t}, v{L+t}, v1")
        e(f"s_mul_i32 s{sT}, s{sW}, 20480\ns_xor_b32 s{sT+1}, s{sW}, 1\ns_mul_i32 s{sT+2}, s{sT+1}, 20480")
        e(f"v_lshlrev_b32 v2, 4, v{VLANE}\nv_add_u32 v3, s{sT+2}, v2\nv_add_u32 v2, s{sT}, v2")
        e(f"s_mul_i32 s{sT}, s{sW}, 1280\ns_mul_i32 s{sT+2}, s{sT+1}, 1280")
        e(f"v_lshlrev_b32 v4, 2, v{VLANE}\nv_add_u32 v4, {LXCH}, v4\nv_add_u32 v5, s{sT+2}, v4\nv_add_u32 v4, s{sT}, v4")
        for t in range(5): e(f"ds_write_b32 v4, v{L+t} offset:{t*256}")
        for n in range(20): e(f"ds_write_b128 v2, {ar(OS+4*n,4)} offset:{XCH + n*1024}")
        e("s_waitcnt vmcnt(0) lgkmcnt(0)\ns_barrier")
        for t in range(5): e(f"ds_read_b32 v{TMP+t}, v5 offset:{t*256}")
        for n in range(20): e(f"ds_read_b128 {vr(Q+4*n,4)}, v3 offset:{XCH + n*1024}")
        e(f"v_and_b32 v6, 15, v{VLANE}\nv_lshrrev_b32 v7, 4, v{VLANE}")
        e(f"s_mul_i32 s{sT}, s{sW}, 10240\ns_add_u32 s{sT}, s{sT}, {TRN}")
        e(f"v_lshlrev_b32 v1, 7, v6\nv_add_u32 v1, s{sT}, v1\nv_and_b32 v2, 1, v7\nv_lshl_add_u32 v1, v2, 3, v1")
        e(f"v_lshrrev_b32 v2, 1, v7\nv_and_b32 v3, 7, v6\nv_xor_b32 v2, v2, v3")
        for x in range(4):
            e(f"v_xor_b32 v3, {2*x}, v2\nv_lshl_add_u32 v{TMP+8+x}, v3, 4, v1")
        e(f"v_lshrrev_b32 v2, 3, v{VLANE}\nv_and_b32 v3, 7, v{VLANE}\nv_xor_b32 v4, v2, v3\nv_lshlrev_b32 v4, 4, v4\nv_lshl_add_u32 v4, v2, 7, v4\nv_add_u32 v{TMP+12}, s{sT}, v4")
        e(f"s_mul_i32 s{sT+1}, s{sRG}, {80*256}\ns_lshl_b32 s{sT+2}, s{sKH}, 7\ns_add_u32 s{sT+1}, s{sT+1}, s{sT+2}")
        e(f"v_lshlrev_b32 v3, 4, v3\nv_lshl_add_u32 v3, v2, 8, v3\nv_add_u32 v{TMP+13}, s{sT+1}, v3")
        e("s_waitcnt lgkmcnt(15)")
        e(f"s_mov_b32 s{sT+4}, {f32bits(self.lo):#x}\ns_mov_b32 s{sT+5}, {f32bits(self.hi):#x}")
        e("s_mov_b64 s[56:57], 0")
        for t in range(5):
            e(f"v_add_f32 v{L+t}, v{L+t}, v{TMP+t}")
            e(f"v_cmp_nle_f32 vcc, s{sT+4}, v{L+t}\ns_or_b64 s[56:57], s[56:57], vcc")
            e(f"v_cmp_nge_f32 vcc, s{sT+5}, v{L+t}\ns_or_b64 s[56:57], s[56:57], vcc")
            e(f"v_rcp_f32 v{L+t}, v{L+t}")
        e("s_waitcnt lgkmcnt(0)")
        for qt in range(5):
            e(f"v_mov_b32 v{TMP+14}, v{L+qt}\nv_mov_b32 v{TMP+15}, v{L+qt}")
            for x in range(4):
                o = OK + (qt*4+x)*4; r = Q + (qt*4+x)*4
                e(f"v_pk_add_f32 {vr(o,2)}, {vr(o,2)}, {vr(r,2)}\nv_pk_add_f32 {vr(o+2,2)}, {vr(o+2,2)}, {vr(r+2,2)}")
                e(f"v_pk_mul_f32 {vr(o,2)}, {vr(o,2)}, {vr(TMP+14,2)}\nv_pk_mul_f32 {vr(o+2,2)}, {vr(o+2,2)}, {vr(TMP+14,2)}")
                e(f"v_cvt_pk_bf16_f32 v{o}, v{o}, v{o+1}\nv_cvt_pk_bf16_f32 v{o+1}, v{o+2}, v{o+3}")
                e(f"ds_write_b64 v{TMP+8+x}, {vr(o,2)} offset:{qt*2048}")
        e("s_waitcnt lgkmcnt(0)")
        for n in range(10):
            e(f"ds_read_b128 {vr(Q+4*n,4)}, v{TMP+12} offset:{n*1024}")
        for n in range(10):
            e(f"s_waitcnt lgkmcnt({9-n})")
            e(f"s_mov_b32 s{sT+6}, {n*2048}")
            e(f"buffer_store_dwordx4 {vr(Q+4*n,4)}, v{TMP+13}, s[{sO}:{sO+3}], s{sT+6} offen")
        e(f"s_cmp_lg_u32 s{sPASS}, 0\ns_cbranch_scc1 L_end")
        e("s_cmp_lg_u64 s[56:57], 0\ns_cselect_b32 s58, 1, 0")
        e(f"s_lshl_b32 s59, s{sW}, 2\ns_add_u32 s59, s59, {FLG}\nv_mov_b32 v1, s59\nv_mov_b32 v2, s58\nds_write_b32 v1, v2")
        e(f"s_waitcnt lgkmcnt(0)\ns_barrier\nv_mov_b32 v1, {FLG}\nds_read_b128 v[4:7], v1\ns_waitcnt lgkmcnt(0)")
        e("v_or_b32 v4, v4, v5\nv_or_b32 v6, v6, v7\nv_or_b32 v4, v4, v6\ns_nop 1\nv_readfirstlane_b32 s58, v4\ns_nop 3\ns_cmp_eq_u32 s58, 0\ns_cbranch_scc1 L_end")
        e("s_waitcnt vmcnt(0)\ns_barrier")
        e("s_branch L_slow")

    def slow_path(self):
        e = self.e
        CI, MX = 224+8, 224+28
        mx = [252, 253, 254, 255, 34]
        e.label("L_slow")
        e(f"s_mov_b32 s{sPASS}, 1")
        self.q_dma()
        self.addrs()
        e("s_waitcnt vmcnt(0)\ns_barrier")
        self.q_read_scale()
        self.q_scale()
        for t in range(5): e(f"v_mov_b32 v{mx[t]}, 0xff800000")
        e(f"s_mov_b32 s{sSOFF}, s{sW4K}")
        e.label("L_smax")
        e(f"s_barrier\ns_mov_b32 m0, s{sMK}\ns_nop 0")
        for i4 in range(4): e(self.dma(sK, sSOFF, i4))
        e("s_waitcnt vmcnt(0)\ns_barrier")
        for n in range(8): e(self.kread(0, 0, n))
        e("s_waitcnt lgkmcnt(0)")
        for t in range(5):
            for n in range(8): e(self.qk(t, 0, 0, n))
            e("s_nop 7\ns_nop 1")
            for k in range(0, 8, 2): e(f"v_max3_f32 v{mx[t]}, v{mx[t]}, v{S+k}, v{S+k+1}")
            e("s_nop 3")
        e(f"s_add_u32 s{sSOFF}, s{sSOFF}, 16384\ns_cmp_lt_u32 s{sSOFF}, 262144\ns_cbranch_scc1 L_smax")
        for t in range(5):
            m = mx[t]
            e(f"v_mov_b32 v1, v{m}\ns_nop 1\nv_permlane32_swap_b32 v1, v{m}\ns_nop 1\nv_max_f32 v{m}, v{m}, v1")
            e(f"v_mov_b32 v1, v{m}\ns_nop 1\nv_permlane16_swap_b32 v1, v{m}\ns_nop 1\nv_max_f32 v{m}, v{m}, v1")
        e(f"s_xor_b32 s{sT+1}, s{sW}, 1\ns_mul_i32 s{sT}, s{sW}, 1280\ns_mul_i32 s{sT+2}, s{sT+1}, 1280")
        e(f"v_lshlrev_b32 v4, 2, v{VLANE}\nv_add_u32 v4, {LXCH}, v4\nv_add_u32 v5, s{sT+2}, v4\nv_add_u32 v4, s{sT}, v4")
        e("s_barrier")
        for t in range(5): e(f"ds_write_b32 v4, v{mx[t]} offset:{t*256}")
        e("s_waitcnt lgkmcnt(0)\ns_barrier")
        for t in range(5): e(f"ds_read_b32 v{S+t}, v5 offset:{t*256}")
        e("s_waitcnt lgkmcnt(0)")
        for t in range(5):
            e(f"v_max_f32 v{mx[t]}, v{mx[t]}, v{S+t}")
            for r in range(4): e(f"v_sub_f32 v{CI+4*t+r}, 0, v{mx[t]}")
        self.zero_acc()
        e(f"s_mov_b32 s{sSOFF}, s{sW4K}")
        e.label("L_smain")
        e(f"s_barrier\ns_mov_b32 m0, s{sMK}\ns_nop 0")
        for i4 in range(4): e(self.dma(sK, sSOFF, i4))
        e(f"s_mov_b32 m0, s{sMV}\ns_nop 0")
        for i4 in range(4): e(self.dma(sV, sSOFF, i4))
        e("s_waitcnt vmcnt(0)\ns_barrier")
        for n in range(8): e(self.kread(0, 0, n))
        e("s_waitcnt lgkmcnt(0)")
        for n in range(16): e(self.vread(0, 0, n))
        e("s_waitcnt lgkmcnt(15)\ns_waitcnt lgkmcnt(0)")
        for t in range(5):
            for n in range(8): e(self.qk(t, 0, 0, n, cinit=vr(CI+4*t, 4)))
            e("s_nop 7\ns_nop 1")
            for k in range(8): e(self.ex(0, k))
            e("s_nop 0")
            if t not in self.Z:
                for k in range(8): e(self.add(t, 0, k))
            for m in range(4): e(self.cvt(0, 0, m))
            e("s_nop 1")
            for d in range(8): e(self.pv(t, 0, 0, d))
            if t in self.Z: e(self.ones(t, 0))
            e("s_nop 3")
        e(f"s_add_u32 s{sSOFF}, s{sSOFF}, 16384\ns_cmp_lt_u32 s{sSOFF}, 262144\ns_cbranch_scc1 L_smain")
        e("s_barrier")
        e("s_branch L_epi")

    def build(self):
        e = self.e
        self.setup()
        if self.fast:
            self.fast_path()
        else:
            self.addrs()
            e("s_branch L_slow")
        self.epilogue()
        self.slow_path()
        e.label("L_end")
        e("s_endpgm")
        hdr = HEADER + "; @launch grid=(256,1,1) block=(256,1,1) lds=163840\n"
        hdr += f""".amdgcn_target "amdgcn-amd-amdhsa--gfx950"
.text
.globl {KNAME}
.p2align 8
.type {KNAME},@function
{KNAME}:
"""
        ftr = f"""
.section .rodata,"a"
.p2align 6
.amdhsa_kernel {KNAME}
  .amdhsa_next_free_vgpr 512
  .amdhsa_next_free_sgpr 102
  .amdhsa_accum_offset 256
  .amdhsa_group_segment_fixed_size 0
  .amdhsa_kernarg_size 48
  .amdhsa_user_sgpr_count 2
  .amdhsa_user_sgpr_kernarg_segment_ptr 1
  .amdhsa_system_sgpr_workgroup_id_x 1
.end_amdhsa_kernel
"""
        return hdr + e.text() + "\n" + ftr

if __name__ == "__main__":
    ap = argparse.ArgumentParser()
    ap.add_argument("--slow", action="store_true")
    ap.add_argument("--Z", default="2,3")
    ap.add_argument("--lo", type=float, default=2.0**-6)
    ap.add_argument("--hi", type=float, default=2.0**100)
    ap.add_argument("-o", default="out.s")
    a = ap.parse_args()
    Z = tuple(int(x) for x in a.Z.split(",") if x != "")
    g = Gen(Z=Z, fast=not a.slow, lo=a.lo, hi=a.hi)
    open(a.o, "w").write(g.build())
```

```python
import sys, argparse
from common import *

sQ, sK, sV, sO = 4, 8, 12, 16
sW, sRG, sKH, sW4K, sSOFF, sPASS = 20, 21, 22, 23, 24, 26
sMK, sMV = 28, 32
sMKC, sMVN, sDUM = 36, 37, 38
sT = 48
KADDR, VADDR, DVO, ONES, L, VLANE = 8, 12, 20, 24, 28, 33
S, P, Q, OK = 36, 52, 64, 144
TMP = 224
OS, KF, VF, LZ = 0, 80, 144, 208
KRING, VRING, QB, DUMMY = 0, 65536, 122880, 131072
XCH, LXCH, TRN, FLG = 0, 81920, 98304, 147456
M16 = "v_mfma_f32_16x16x32_bf16"

def oacc(qt, dtp):
    if dtp < 4: return vr(OK + (qt*4+dtp)*4, 4)
    return ar(OS + (qt*4+dtp-4)*4, 4)

class Gen:
    def stamp(self, k):
        if self.dbg: self.e(f"s_memrealtime s[{64+2*k}:{65+2*k}]")
    def dump_stamps(self, n):
        if not self.dbg: return
        e = self.e
        e("s_load_dwordx2 s[90:91], s[0:1], 32\ns_waitcnt lgkmcnt(0)")
        e("s_mov_b32 s92, s90\ns_and_b32 s93, s91, 0xffff\ns_mov_b32 s94, 256\ns_mov_b32 s95, 0x20000")
        e(f"v_cmp_eq_u32 vcc, 0, v{VLANE}\ns_and_saveexec_b64 s[96:97], vcc\ns_cbranch_execz L_nodump")
        for k in range(n):
            e(f"v_mov_b32 v1, s{64+2*k}\nv_not_b32 v2, v1\nv_mov_b32 v3, {8*k}")
            e(f"buffer_atomic_umax v1, v3, s[92:95], 0 offen\nbuffer_atomic_umax v2, v3, s[92:95], 0 offen offset:4\ns_waitcnt vmcnt(0)")
        e.label("L_nodump")
        e("s_mov_b64 exec, s[96:97]")
    def __init__(self, Z=(2,3), fast=True, dbg=0, lo=2.0**-6, hi=2.0**100):
        self.e = Em(); self.Z = set(Z); self.fast = fast; self.dbg = dbg; self.lo = lo; self.hi = hi

    def setup(self):
        e = self.e
        e(f"s_cmp_ge_u32 s2, 256\ns_cbranch_scc1 L_end")
        self.stamp(0)
        e("s_load_dwordx4 s[40:43], s[0:1], 0\ns_load_dwordx4 s[44:47], s[0:1], 16")
        e(f"v_lshrrev_b32 v1, 6, v0\nv_and_b32 v{VLANE}, 63, v0")
        e(f"s_and_b32 s48, s2, 7\ns_lshr_b32 s49, s2, 3")
        e(f"v_readfirstlane_b32 s{sW}, v1")
        e("s_lshl_b32 s50, s48, 5\ns_add_u32 s50, s50, s49\ns_mul_i32 s50, s50, 40960")
        e("s_lshl_b32 s51, s48, 3\ns_lshr_b32 s52, s49, 2\ns_add_u32 s51, s51, s52\ns_lshl_b32 s51, s51, 18")
        e(f"s_lshr_b32 s{sRG}, s{sW}, 1\ns_and_b32 s{sKH}, s{sW}, 1\ns_lshl_b32 s{sW4K}, s{sW}, 12")
        e(f"s_mov_b32 s{sPASS}, 0")
        e("s_waitcnt lgkmcnt(0)")
        for srd, ptr, off, n in ((sQ, 40, 50, 40960), (sK, 42, 51, 262144), (sV, 44, 51, 262144), (sO, 46, 50, 40960)):
            e(f"s_add_u32 s{srd}, s{ptr}, s{off}\ns_addc_u32 s{srd+1}, s{ptr+1}, 0\ns_and_b32 s{srd+1}, s{srd+1}, 0xffff")
            e(f"s_mov_b32 s{srd+2}, {n}\ns_mov_b32 s{srd+3}, 0x20000")
        e(f"v_and_b32 v2, 15, v{VLANE}\nv_lshrrev_b32 v3, 4, v{VLANE}")
        for ee in range(2):
            e(f"v_add_u32 v4, {4*ee}, v3\nv_lshlrev_b32 v4, 1, v4\nv_xor_b32 v4, v2, v4\nv_lshlrev_b32 v4, 4, v4")
            e(f"v_lshl_add_u32 v{DVO+ee}, v3, 8, v4")
    def addrs(self):
        e = self.e
        e(f"v_and_b32 v2, 15, v{VLANE}\nv_lshrrev_b32 v3, 4, v{VLANE}")
        e(f"s_lshl_b32 s{sT}, s{sKH}, 5")
        e(f"v_and_b32 v4, 7, v2\nv_lshlrev_b32 v4, 1, v4")
        e(f"v_add_u32 v5, s{sT}, v2\nv_lshlrev_b32 v5, 8, v5")
        for ks in range(4):
            e(f"v_add_u32 v6, {4*ks}, v3\nv_xor_b32 v6, v6, v4\nv_lshl_add_u32 v{KADDR+ks}, v6, 4, v5")
        e(f"v_lshrrev_b32 v4, 2, v2")
        e(f"v_and_b32 v5, 1, v3\nv_lshl_add_u32 v5, v5, 2, v4")
        e(f"s_lshl_b32 s{sT+1}, s{sKH}, 2\nv_xor_b32 v5, s{sT+1}, v5")
        e(f"v_lshl_add_u32 v6, v3, 2, v4\nv_add_u32 v6, s{sT}, v6\nv_lshlrev_b32 v6, 8, v6")
        e(f"v_and_b32 v7, 3, v2\nv_lshl_add_u32 v6, v7, 3, v6\nv_add_u32 v6, {VRING}, v6")
        for d in range(8):
            e(f"v_xor_b32 v7, {d}, v5\nv_lshl_add_u32 v{VADDR+d}, v7, 5, v6")
        for r in range(4): e(f"v_mov_b32 v{ONES+r}, 0x3f803f80")
        for j in range(4):
            e(f"s_add_u32 s{sMK+j}, s{sW4K}, {KRING + j*16384}\ns_add_u32 s{sMV+j}, s{sW4K}, {VRING + j*16384}")
        e(f"s_add_u32 s{sDUM}, s{sW4K}, {DUMMY}")
    def dma(self, srd, soff, i4):
        return f"buffer_load_dwordx4 v{DVO + (i4 & 1)}, s[{srd}:{srd+3}], s{soff} offen offset:{1024*i4} lds"
    def q_dma(self):
        e = self.e
        e(f"s_mul_i32 s{sT}, s{sRG}, {80*256}\ns_lshl_b32 s{sT+1}, s{sKH}, 11\ns_add_u32 s{sT}, s{sT}, s{sT+1}")
        for qt in range(5):
            e(f"s_add_u32 s{sT+2}, s{sT}, {qt*4096}\ns_add_u32 m0, s{sT+2}, {QB}\ns_nop 0")
            e(self.dma(sQ, sT+2, 0)); e(self.dma(sQ, sT+2, 1))
    def kv_dma(self, which, stage, slot, n=4):
        e = self.e
        srd = sK if which == 'k' else sV
        base = (KRING if which == 'k' else VRING) + slot*16384
        e(f"s_add_u32 s{sT+3}, s{sW4K}, {stage*16384}\ns_add_u32 m0, s{sW4K}, {base}\ns_nop 0")
        for i4 in range(n): e(self.dma(srd, sT+3, i4))
    def q_read_scale(self):
        e = self.e
        e(f"s_mul_i32 s{sT}, s{sRG}, {80*256}\ns_lshl_b32 s{sT+1}, s{sKH}, 13\ns_sub_u32 s{sT}, s{sT}, s{sT+1}\ns_add_u32 s{sT}, s{sT}, {QB}")
        for ks in range(4): e(f"v_add_u32 v{TMP+ks}, s{sT}, v{KADDR+ks}")
        for qt in range(5):
            for ks in range(4):
                e(f"ds_read_b128 {vr(Q+(qt*4+ks)*4,4)}, v{TMP+ks} offset:{qt*4096}")
        e("s_waitcnt lgkmcnt(0)")
    def q_scale(self):
        e = self.e
        e(f"s_mov_b32 s{sT}, {C_SCALE:#x}\ns_mov_b32 s{sT+1}, {C_SCALE:#x}\ns_mov_b32 s{sT+2}, 0xffff0000")
        for r in range(0, 80, 4):
            for k in range(4):
                e(f"v_lshlrev_b32 v{TMP+2*k}, 16, v{Q+r+k}\nv_and_b32 v{TMP+2*k+1}, s{sT+2}, v{Q+r+k}")
            for k in range(4):
                e(f"v_pk_mul_f32 {vr(TMP+2*k,2)}, {vr(TMP+2*k,2)}, s[{sT}:{sT+1}]")
            for k in range(4):
                e(f"v_cvt_pk_bf16_f32 v{Q+r+k}, v{TMP+2*k}, v{TMP+2*k+1}")
    def zero_acc(self):
        e = self.e
        for r in range(80): e(f"v_mov_b32 v{OK+r}, 0")
        for r in range(80): e(f"v_accvgpr_write_b32 a{OS+r}, 0")
        for r in range(20): e(f"v_accvgpr_write_b32 a{LZ+r}, 0")
        for t in range(5): e(f"v_mov_b32 v{L+t}, 0")
    def kread(self, buf, slot, n):
        kt, ks = n // 4, n % 4
        return f"ds_read_b128 {ar(KF+buf*32+n*4,4)}, v{KADDR+ks} offset:{slot*16384 + kt*4096}"
    def vread(self, buf, slot, n):
        d, h2 = n // 2, n % 2
        return f"ds_read_b64_tr_b16 {ar(VF+buf*32+d*4+2*h2,2)}, v{VADDR+d} offset:{slot*16384 + h2*4096}"
    def qk(self, tile, kbuf, sb, n, cinit=None):
        kt, ks = n // 4, n % 4
        d = vr(S + sb*8 + kt*4, 4)
        c = d if ks else (cinit if cinit else "0")
        return f"{M16} {d}, {ar(KF+kbuf*32+n*4,4)}, {vr(Q+(tile*4+ks)*4,4)}, {c}"
    def pv(self, tile, vbuf, pb, dtp):
        o = oacc(tile, dtp)
        return f"{M16} {o}, {ar(VF+vbuf*32+dtp*4,4)}, {vr(P+pb*4,4)}, {o}"
    def ones(self, tile, pb):
        o = ar(LZ+tile*4, 4)
        return f"{M16} {o}, {vr(ONES,4)}, {vr(P+pb*4,4)}, {o}"
    def ex(self, sb, k): return f"v_exp_f32 v{S+sb*8+k}, v{S+sb*8+k}"
    def add(self, tile, sb, k): return f"v_add_f32 v{L+tile}, v{L+tile}, v{S+sb*8+k}"
    def cvt(self, sb, pb, m): return f"v_cvt_pk_bf16_f32 v{P+pb*4+m}, v{S+sb*8+2*m}, v{S+sb*8+2*m+1}"

    def build_template(self):
        Z = self.Z
        slots = []
        free = []
        for j in range(5):
            gaps = []
            ms = [('qk', n) for n in range(8)] + [('pv', d) for d in range(8)]
            zt = j in Z
            if zt:
                v = {3: [('c',0)], 7: [('c',1)], 11: [('c',2)], 15: [('c',3)]}
                fr = {1:'W',3:'s',5:'W',7:'s',9:'W',11:'s',13:'W',15:'s'}
            else:
                v = {3: [('a',0),('a',1)], 5: [('c',0),('a',2)], 7: [('a',3),('c',1)], 11: [('a',4),('a',5)], 13: [('c',2),('a',6)], 15: [('a',7),('c',3)]}
                fr = {1:'W', 9:'W'}
            for g in range(16):
                fill = []
                if g % 2 == 0: fill = [('e', g//2)]
                else: fill = list(v.get(g, []))
                gaps.append(dict(m=ms[g], fill=fill, slot=j, free=fr.get(g), sh=[]))
                if g == 11 and ((j-1) % 5) in Z:
                    gaps.append(dict(m=('one',), fill=[], slot=j, free='W', sh=[]))
            slots.append(gaps)
        seq = []
        order = [(1, True)] + [(j, None) for j in (2,3,4,0)] + [(1, False)]
        for j, after in order:
            for gi, gp in enumerate(slots[j]):
                if gp['free'] is None: continue
                if after is True and gi < 8: continue
                if after is False and gi >= 8: continue
                prev = (j == 0) or (after is False)
                seq.append((gp, prev, j, gi))
        nW = sum(1 for x in seq if x[0]['free'] == 'W'); nS = len(seq) - nW
        items = [('k', n) for n in range(8)] + [('v', n) for n in range(16)]
        Wpos = [i for i, x in enumerate(seq) if x[0]['free'] == 'W']
        ndma = 8
        need_W_for_ds = max(0, (24 - nS + 1)//2)
        assert nW - ndma >= need_W_for_ds or True
        dmapos = set([Wpos[0]] + Wpos[-(ndma-1):])
        di = 0; ii = 0
        over = []
        for i, (gp, prev, j, gi) in enumerate(seq):
            if i in dmapos:
                gp['fill'] = [('d', di, prev)]; di += 1
            else:
                n = 2 if gp['free'] == 'W' else 1
                take = items[ii:ii+n]; ii += n
                gp['fill'] = [(a, b, prev) for a, b in take] + gp['fill']
                for a, b in take:
                    gp.setdefault('ds', []).append((a, b))
        if ii < len(items):
            print(f"; WARNING: {len(items)-ii} DS items overflow", file=sys.stderr)
            for i, (gp, prev, j, gi) in enumerate(seq):
                if ii >= len(items): break
                if i not in dmapos and gp['free'] == 'W' and not prev:
                    a, b = items[ii]; ii += 1
                    gp['fill'] = [(a, b, prev)] + gp['fill']
        assert di == 8 and ii >= len(items)
        return slots

    def emit_gap(self, gp, s, j, do_mfma=True, skip=()):
        e = self.e
        u = 5*s + j
        m = gp['m']
        if not do_mfma: e("s_nop 0")
        if do_mfma:
            if m[0] == 'qk':
                t = (j+1) % 5; s1 = s + (1 if j == 4 else 0)
                e(self.qk(t, s1 % 2, (u+1) % 2, m[1]))
            elif m[0] == 'pv':
                t = (j-1) % 5; s0 = s - (1 if j == 0 else 0)
                e(self.pv(t, s0 % 2, (u-1) % 2, m[1]))
            else:
                t = (j-1) % 5
                e(self.ones(t, (u-1) % 2))
        for x in gp['sh']:
            e(x(s))
        for it in gp['fill']:
            k = it[0]
            if k in skip: continue
            if k == 'e': e(self.ex(u % 2, it[1]))
            elif k == 'a': e(self.add(j, u % 2, it[1]))
            elif k == 'c': e(self.cvt(u % 2, u % 2, it[1]))
            else:
                sw = s - (1 if it[2] else 0)
                if k == 'k': e(self.kread((sw+1) % 2, (sw+1) % 4, it[1]))
                elif k == 'v': e(self.vread((sw+1) % 2, (sw+1) % 4, it[1]))
                elif k == 'd':
                    n = it[1]
                    e(self.dma(sK if n < 4 else sV, sSOFF, n % 4))

    def finish_template(self, slots):
        flat = [(j, gi, gp) for j in range(5) for gi, gp in enumerate(slots[j])]
        g7 = slots[1][7]
        g7['sh'].append(lambda s: "s_waitcnt vmcnt(16) lgkmcnt(0)\ns_barrier")
        slots[1][2]['sh'].append(lambda s: f"s_add_u32 s{sSOFF}, s{sSOFF}, 16384")
        slots[1][4]['sh'].append(lambda s: f"s_cmp_lt_u32 s{sSOFF}, 262144")
        slots[1][5]['sh'].append(lambda s: f"s_cselect_b32 s{sMKC}, s{sMK + s % 4}, s{sDUM}")
        slots[1][6]['sh'].append(lambda s: f"s_cselect_b32 s{sMVN}, s{sMV + s % 4}, s{sDUM}")
        slots[1][8]['sh'].append(lambda s: f"s_mov_b32 m0, s{sMKC}")
        order = [(1, 8, 99)] + [(j, 0, 99) for j in (2,3,4,0)] + [(1, 0, 8)]
        seq = []
        for j, a, b in order:
            for gi, gp in enumerate(slots[j]):
                if a <= gi < b: seq.append(gp)
        idx = [i for i, gp in enumerate(seq) if any(it[0] == 'd' and it[1] == 4 for it in gp['fill'])][0]
        assert not any(it[0] == 'd' for it in seq[idx-1]['fill'])
        seq[idx-1]['sh'].append(lambda s: f"s_mov_b32 m0, s{sMVN}")
        lastk = max(i for i, gp in enumerate(seq) if any(it[0] == 'k' for it in gp['fill']))
        endi = [i for i, gp in enumerate(seq) if gp is slots[3][-1]][0]
        assert lastk <= endi, "K read after deadline"
        cnt = 0
        gpk = seq[lastk]; its = gpk['fill']; lk = max(i for i, it in enumerate(its) if it[0] == 'k')
        cnt += sum(1 for it in its[lk+1:] if it[0] in 'kv')
        for gp in seq[lastk+1:endi+1]: cnt += sum(1 for it in gp['fill'] if it[0] in 'kv')
        self.kwait = min(cnt, 15)
        self.slot3_tail = f"s_waitcnt lgkmcnt({self.kwait})"
        lastv = max(i for i, gp in enumerate(seq) if any(it[0] == 'v' for it in gp['fill']))
        self.sched_info = dict(lastk=(lastk, seq[lastk]['slot']), lastv=(lastv, seq[lastv]['slot']), kwait=self.kwait)

    def emit_slot(self, slots, s, j, g0=0, g1=99, do_mfma=True, skip=(), skipm=()):
        for gi, gp in enumerate(slots[j]):
            if g0 <= gi < g1:
                self.emit_gap(gp, s, j, do_mfma=do_mfma and gp['m'][0] not in skipm, skip=skip)
        if j == 3 and g1 >= len(slots[j]): self.e(self.slot3_tail)

    def fast_path(self):
        e = self.e
        slots = self.build_template(); self.finish_template(slots); self.slots = slots
        e.c(f"schedule: {self.sched_info}")
        e.c("prologue")
        self.q_dma()
        for st in range(3):
            self.kv_dma('k', st, st); self.kv_dma('v', st, st)
        self.kv_dma('k', 3, 3)
        self.addrs()
        self.zero_acc()
        e("s_waitcnt vmcnt(28)\ns_barrier")
        self.stamp(1)
        self.q_read_scale()
        e("s_barrier")
        self.kv_dma('v', 3, 3, n=3)
        self.q_scale()
        e("s_waitcnt vmcnt(23)\ns_barrier")
        for n in range(8): e(self.kread(0, 0, n))
        for n in range(16): e(self.vread(0, 0, n))
        e(f"s_add_u32 s{sSOFF}, s{sW4K}, {3*16384}")
        e("s_waitcnt lgkmcnt(15)\ns_waitcnt lgkmcnt(0)")
        for n in range(8): e(self.qk(0, 0, 0, n))
        for n in range(8): e(self.qk(1, 0, 1, n))
        e("s_nop 7")
        for k in range(8): e(self.ex(0, k))
        e("s_nop 0")
        if 0 not in self.Z:
            for k in range(8): e(self.add(0, 0, k))
        for m in range(4): e(self.cvt(0, 0, m))
        e("s_nop 1")
        self.stamp(2)
        e("s_branch L_entry")
        e(".p2align 6")
        e.label("L_top")
        h2 = [gi for gi, gp in enumerate(slots[0]) if gp['m'][0] != 'qk'][0]
        self.emit_slot(slots, 0, 0, g0=h2)
        e.label("L_entry")
        for s in range(4):
            for j in range(5):
                if s == 0 and j == 0: continue
                if s == 3 and j == 4:
                    e(f"s_cmp_ge_u32 s{sSOFF}, {19*16384}\ns_cbranch_scc1 L_tail")
                self.emit_slot(slots, s, j)
        self.emit_slot(slots, 4, 0, g1=h2)
        e("s_branch L_top")
        e.label("L_tail")
        self.emit_slot(slots, 3, 4, skip=('k','v','d'), skipm=('qk',))
        e("s_nop 1")
        h2 = [gi for gi, gp in enumerate(slots[0]) if gp['m'][0] != 'qk'][0]
        for gp in slots[0][h2:]:
            self.emit_gap(dict(m=gp['m'], fill=[], sh=[]), 4, 0)

    def epilogue(self):
        e = self.e
        e.label("L_epi")
        self.stamp(3)
        e("s_nop 7\ns_nop 7")
        for t in range(5):
            if t in self.Z:
                e(f"v_accvgpr_read_b32 v{L+t}, a{LZ+4*t}")
            else:
                e(f"v_mov_b32 v1, v{L+t}\ns_nop 1\nv_permlane32_swap_b32 v1, v{L+t}\ns_nop 1\nv_add_f32 v{L+t}, v{L+t}, v1")
                e(f"v_mov_b32 v1, v{L+t}\ns_nop 1\nv_permlane16_swap_b32 v1, v{L+t}\ns_nop 1\nv_add_f32 v{L+t}, v{L+t}, v1")
        e(f"s_mul_i32 s{sT}, s{sW}, 20480\ns_xor_b32 s{sT+1}, s{sW}, 1\ns_mul_i32 s{sT+2}, s{sT+1}, 20480")
        e(f"v_lshlrev_b32 v2, 4, v{VLANE}\nv_add_u32 v3, s{sT+2}, v2\nv_add_u32 v2, s{sT}, v2")
        e(f"s_mul_i32 s{sT}, s{sW}, 1280\ns_mul_i32 s{sT+2}, s{sT+1}, 1280")
        e(f"v_lshlrev_b32 v4, 2, v{VLANE}\nv_add_u32 v4, {LXCH}, v4\nv_add_u32 v5, s{sT+2}, v4\nv_add_u32 v4, s{sT}, v4")
        for t in range(5): e(f"ds_write_b32 v4, v{L+t} offset:{t*256}")
        for n in range(20): e(f"ds_write_b128 v2, {ar(OS+4*n,4)} offset:{XCH + n*1024}")
        e("s_waitcnt vmcnt(0) lgkmcnt(0)\ns_barrier")
        self.stamp(4)
        for t in range(5): e(f"ds_read_b32 v{TMP+t}, v5 offset:{t*256}")
        for n in range(20): e(f"ds_read_b128 {vr(Q+4*n,4)}, v3 offset:{XCH + n*1024}")
        e(f"v_and_b32 v6, 15, v{VLANE}\nv_lshrrev_b32 v7, 4, v{VLANE}")
        e(f"s_mul_i32 s{sT}, s{sW}, 10240\ns_add_u32 s{sT}, s{sT}, {TRN}")
        e(f"v_lshlrev_b32 v1, 7, v6\nv_add_u32 v1, s{sT}, v1\nv_and_b32 v2, 1, v7\nv_lshl_add_u32 v1, v2, 3, v1")
        e(f"v_lshrrev_b32 v2, 1, v7\nv_and_b32 v3, 7, v6\nv_xor_b32 v2, v2, v3")
        for x in range(4):
            e(f"v_xor_b32 v3, {2*x}, v2\nv_lshl_add_u32 v{TMP+8+x}, v3, 4, v1")
        e(f"v_lshrrev_b32 v2, 3, v{VLANE}\nv_and_b32 v3, 7, v{VLANE}\nv_xor_b32 v4, v2, v3\nv_lshlrev_b32 v4, 4, v4\nv_lshl_add_u32 v4, v2, 7, v4\nv_add_u32 v{TMP+12}, s{sT}, v4")
        e(f"s_mul_i32 s{sT+1}, s{sRG}, {80*256}\ns_lshl_b32 s{sT+2}, s{sKH}, 7\ns_add_u32 s{sT+1}, s{sT+1}, s{sT+2}")
        e(f"v_lshlrev_b32 v3, 4, v3\nv_lshl_add_u32 v3, v2, 8, v3\nv_add_u32 v{TMP+13}, s{sT+1}, v3")
        e("s_waitcnt lgkmcnt(15)")
        e(f"s_mov_b32 s{sT+4}, {f32bits(self.lo):#x}\ns_mov_b32 s{sT+5}, {f32bits(self.hi):#x}")
        e("s_mov_b64 s[56:57], 0")
        for t in range(5):
            e(f"v_add_f32 v{L+t}, v{L+t}, v{TMP+t}")
            e(f"v_cmp_nle_f32 vcc, s{sT+4}, v{L+t}\ns_or_b64 s[56:57], s[56:57], vcc")
            e(f"v_cmp_nge_f32 vcc, s{sT+5}, v{L+t}\ns_or_b64 s[56:57], s[56:57], vcc")
            e(f"v_rcp_f32 v{L+t}, v{L+t}")
        e("s_waitcnt lgkmcnt(0)")
        for qt in range(5):
            e(f"v_mov_b32 v{TMP+14}, v{L+qt}\nv_mov_b32 v{TMP+15}, v{L+qt}")
            for x in range(4):
                o = OK + (qt*4+x)*4; r = Q + (qt*4+x)*4
                e(f"v_pk_add_f32 {vr(o,2)}, {vr(o,2)}, {vr(r,2)}\nv_pk_add_f32 {vr(o+2,2)}, {vr(o+2,2)}, {vr(r+2,2)}")
                e(f"v_pk_mul_f32 {vr(o,2)}, {vr(o,2)}, {vr(TMP+14,2)}\nv_pk_mul_f32 {vr(o+2,2)}, {vr(o+2,2)}, {vr(TMP+14,2)}")
                e(f"v_cvt_pk_bf16_f32 v{o}, v{o}, v{o+1}\nv_cvt_pk_bf16_f32 v{o+1}, v{o+2}, v{o+3}")
                e(f"ds_write_b64 v{TMP+8+x}, {vr(o,2)} offset:{qt*2048}")
        e("s_waitcnt lgkmcnt(0)")
        for n in range(10):
            e(f"ds_read_b128 {vr(Q+4*n,4)}, v{TMP+12} offset:{n*1024}")
        for n in range(10):
            e(f"s_waitcnt lgkmcnt({9-n})")
            e(f"s_mov_b32 s{sT+6}, {n*2048}")
            e(f"buffer_store_dwordx4 {vr(Q+4*n,4)}, v{TMP+13}, s[{sO}:{sO+3}], s{sT+6} offen")
        self.stamp(5)
        if self.dbg:
            e("s_waitcnt vmcnt(0)")
            self.stamp(6)
            e("s_waitcnt lgkmcnt(0)")
            self.dump_stamps(7)
        e(f"s_cmp_lg_u32 s{sPASS}, 0\ns_cbranch_scc1 L_end")
        e("s_cmp_lg_u64 s[56:57], 0\ns_cselect_b32 s58, 1, 0")
        e(f"s_lshl_b32 s59, s{sW}, 2\ns_add_u32 s59, s59, {FLG}\nv_mov_b32 v1, s59\nv_mov_b32 v2, s58\nds_write_b32 v1, v2")
        e(f"s_waitcnt lgkmcnt(0)\ns_barrier\nv_mov_b32 v1, {FLG}\nds_read_b128 v[4:7], v1\ns_waitcnt lgkmcnt(0)")
        e("v_or_b32 v4, v4, v5\nv_or_b32 v6, v6, v7\nv_or_b32 v4, v4, v6\ns_nop 1\nv_readfirstlane_b32 s58, v4\ns_nop 3\ns_cmp_eq_u32 s58, 0\ns_cbranch_scc1 L_end")
        e("s_waitcnt vmcnt(0)\ns_barrier")
        e("s_branch L_slow")

    def slow_path(self):
        e = self.e
        CI, MX = 224+8, 224+28
        mx = [252, 253, 254, 255, 34]
        e.label("L_slow")
        e(f"s_mov_b32 s{sPASS}, 1")
        self.q_dma()
        self.addrs()
        e("s_waitcnt vmcnt(0)\ns_barrier")
        self.q_read_scale()
        self.q_scale()
        for t in range(5): e(f"v_mov_b32 v{mx[t]}, 0xff800000")
        e(f"s_mov_b32 s{sSOFF}, s{sW4K}")
        e.label("L_smax")
        e(f"s_barrier\ns_mov_b32 m0, s{sMK}\ns_nop 0")
        for i4 in range(4): e(self.dma(sK, sSOFF, i4))
        e("s_waitcnt vmcnt(0)\ns_barrier")
        for n in range(8): e(self.kread(0, 0, n))
        e("s_waitcnt lgkmcnt(0)")
        for t in range(5):
            for n in range(8): e(self.qk(t, 0, 0, n))
            e("s_nop 7\ns_nop 1")
            for k in range(0, 8, 2): e(f"v_max3_f32 v{mx[t]}, v{mx[t]}, v{S+k}, v{S+k+1}")
            e("s_nop 3")
        e(f"s_add_u32 s{sSOFF}, s{sSOFF}, 16384\ns_cmp_lt_u32 s{sSOFF}, 262144\ns_cbranch_scc1 L_smax")
        for t in range(5):
            m = mx[t]
            e(f"v_mov_b32 v1, v{m}\ns_nop 1\nv_permlane32_swap_b32 v1, v{m}\ns_nop 1\nv_max_f32 v{m}, v{m}, v1")
            e(f"v_mov_b32 v1, v{m}\ns_nop 1\nv_permlane16_swap_b32 v1, v{m}\ns_nop 1\nv_max_f32 v{m}, v{m}, v1")
        e(f"s_xor_b32 s{sT+1}, s{sW}, 1\ns_mul_i32 s{sT}, s{sW}, 1280\ns_mul_i32 s{sT+2}, s{sT+1}, 1280")
        e(f"v_lshlrev_b32 v4, 2, v{VLANE}\nv_add_u32 v4, {LXCH}, v4\nv_add_u32 v5, s{sT+2}, v4\nv_add_u32 v4, s{sT}, v4")
        e("s_barrier")
        for t in range(5): e(f"ds_write_b32 v4, v{mx[t]} offset:{t*256}")
        e("s_waitcnt lgkmcnt(0)\ns_barrier")
        for t in range(5): e(f"ds_read_b32 v{S+t}, v5 offset:{t*256}")
        e("s_waitcnt lgkmcnt(0)")
        for t in range(5):
            e(f"v_max_f32 v{mx[t]}, v{mx[t]}, v{S+t}")
            for r in range(4): e(f"v_sub_f32 v{CI+4*t+r}, 0, v{mx[t]}")
        self.zero_acc()
        e(f"s_mov_b32 s{sSOFF}, s{sW4K}")
        e.label("L_smain")
        e(f"s_barrier\ns_mov_b32 m0, s{sMK}\ns_nop 0")
        for i4 in range(4): e(self.dma(sK, sSOFF, i4))
        e(f"s_mov_b32 m0, s{sMV}\ns_nop 0")
        for i4 in range(4): e(self.dma(sV, sSOFF, i4))
        e("s_waitcnt vmcnt(0)\ns_barrier")
        for n in range(8): e(self.kread(0, 0, n))
        e("s_waitcnt lgkmcnt(0)")
        for n in range(16): e(self.vread(0, 0, n))
        e("s_waitcnt lgkmcnt(15)\ns_waitcnt lgkmcnt(0)")
        for t in range(5):
            for n in range(8): e(self.qk(t, 0, 0, n, cinit=vr(CI+4*t, 4)))
            e("s_nop 7\ns_nop 1")
            for k in range(8): e(self.ex(0, k))
            e("s_nop 0")
            if t not in self.Z:
                for k in range(8): e(self.add(t, 0, k))
            for m in range(4): e(self.cvt(0, 0, m))
            e("s_nop 1")
            for d in range(8): e(self.pv(t, 0, 0, d))
            if t in self.Z: e(self.ones(t, 0))
            e("s_nop 3")
        e(f"s_add_u32 s{sSOFF}, s{sSOFF}, 16384\ns_cmp_lt_u32 s{sSOFF}, 262144\ns_cbranch_scc1 L_smain")
        e("s_barrier")
        e("s_branch L_epi")

    def build(self):
        e = self.e
        self.setup()
        if self.fast:
            self.fast_path()
        else:
            self.addrs()
            e("s_branch L_slow")
        self.epilogue()
        self.slow_path()
        e.label("L_end")
        e("s_endpgm")
        hdr = HEADER + "; @launch grid=(256,1,1) block=(256,1,1) lds=163840\n"
        hdr += f""".amdgcn_target "amdgcn-amd-amdhsa--gfx950"
.text
.globl {KNAME}
.p2align 8
.type {KNAME},@function
{KNAME}:
"""
        ftr = f"""
.section .rodata,"a"
.p2align 6
.amdhsa_kernel {KNAME}
  .amdhsa_next_free_vgpr 512
  .amdhsa_next_free_sgpr 102
  .amdhsa_accum_offset 256
  .amdhsa_group_segment_fixed_size 0
  .amdhsa_kernarg_size 48
  .amdhsa_user_sgpr_count 2
  .amdhsa_user_sgpr_kernarg_segment_ptr 1
  .amdhsa_system_sgpr_workgroup_id_x 1
.end_amdhsa_kernel
"""
        return hdr + e.text() + "\n" + ftr

if __name__ == "__main__":
    ap = argparse.ArgumentParser()
    ap.add_argument("--slow", action="store_true")
    ap.add_argument("--Z", default="2,3")
    ap.add_argument("--lo", type=float, default=2.0**-6)
    ap.add_argument("--hi", type=float, default=2.0**100)
    ap.add_argument("--dbg", type=int, default=0)
    ap.add_argument("-o", default="out.s")
    a = ap.parse_args()
    Z = tuple(int(x) for x in a.Z.split(",") if x != "")
    g = Gen(Z=Z, fast=not a.slow, lo=a.lo, hi=a.hi, dbg=a.dbg)
    open(a.o, "w").write(g.build())
```

```python
import sys, argparse
from common import *

sQ, sK, sV, sO = 4, 8, 12, 16
sW, sRG, sKH, sW4K, sSOFF, sPASS = 20, 21, 22, 23, 24, 26
sMK, sMV = 28, 32
sMKC, sMVN, sDUM = 36, 37, 38
sT = 48
KADDR, VADDR, DVO, ONES, L, VLANE = 8, 12, 20, 24, 28, 33
S, P, Q, OK = 36, 52, 64, 144
TMP = 224
OS, KF, VF, LZ = 0, 80, 144, 208
KRING, VRING, QB, DUMMY = 0, 65536, 122880, 131072
XCH, LXCH, TRN, FLG = 0, 81920, 98304, 147456
M16 = "v_mfma_f32_16x16x32_bf16"

def oacc(qt, dtp):
    if dtp < 4: return vr(OK + (qt*4+dtp)*4, 4)
    return ar(OS + (qt*4+dtp-4)*4, 4)

class Gen:
    def stamp(self, k, cyc=False):
        if self.dbg: self.e(f"s_memrealtime s[{64+2*k}:{65+2*k}]")
    def cstamp(self, k):
        if self.dbg == 2: self.e(f"s_memtime s[{84+2*k}:{85+2*k}]")
    def dump_stamps(self, n):
        if not self.dbg: return
        e = self.e
        if self.dbg == 2:
            e("s_load_dwordx2 s[90:91], s[0:1], 40\ns_waitcnt lgkmcnt(0)")
            e("s_mov_b32 s92, s90\ns_and_b32 s93, s91, 0xffff\ns_mov_b32 s94, 0x100000\ns_mov_b32 s95, 0x20000")
            e(f"s_lshl_b32 s98, s2, 2\ns_add_u32 s98, s98, s{sW}\ns_lshl_b32 s98, s98, 6")
            e(f"v_cmp_eq_u32 vcc, 0, v{VLANE}\ns_and_saveexec_b64 s[96:97], vcc\ns_cbranch_execz L_nodump")
            e("v_mov_b32 v3, s98")
            for k in range(10):
                e(f"v_mov_b32 v1, s{64+2*k}\nbuffer_store_dword v1, v3, s[92:95], 0 offen offset:{4*k}")
            for k in range(2):
                e(f"v_mov_b32 v1, s{84+2*k}\nbuffer_store_dword v1, v3, s[92:95], 0 offen offset:{40+4*k}")
            e("s_waitcnt vmcnt(0)")
            e.label("L_nodump")
            e("s_mov_b64 exec, s[96:97]")
            return
        e("s_load_dwordx2 s[90:91], s[0:1], 32\ns_waitcnt lgkmcnt(0)")
        e("s_mov_b32 s92, s90\ns_and_b32 s93, s91, 0xffff\ns_mov_b32 s94, 256\ns_mov_b32 s95, 0x20000")
        e(f"v_cmp_eq_u32 vcc, 0, v{VLANE}\ns_and_saveexec_b64 s[96:97], vcc\ns_cbranch_execz L_nodump")
        for k in range(n):
            e(f"v_mov_b32 v1, s{64+2*k}\nv_not_b32 v2, v1\nv_mov_b32 v3, {8*k}")
            e(f"buffer_atomic_umax v1, v3, s[92:95], 0 offen\nbuffer_atomic_umax v2, v3, s[92:95], 0 offen offset:4\ns_waitcnt vmcnt(0)")
        e.label("L_nodump")
        e("s_mov_b64 exec, s[96:97]")
    def __init__(self, Z=(2,3), fast=True, dbg=0, lo=2.0**-6, hi=2.0**100):
        self.stflags = ""
        self.e = Em(); self.Z = set(Z); self.fast = fast; self.dbg = dbg; self.lo = lo; self.hi = hi

    def setup(self):
        e = self.e
        e(f"s_cmp_ge_u32 s2, 256\ns_cbranch_scc1 L_end")
        self.stamp(0)
        e("s_load_dwordx4 s[40:43], s[0:1], 0\ns_load_dwordx4 s[44:47], s[0:1], 16")
        e(f"v_lshrrev_b32 v1, 6, v0\nv_and_b32 v{VLANE}, 63, v0")
        e(f"s_and_b32 s48, s2, 7\ns_lshr_b32 s49, s2, 3")
        e(f"v_readfirstlane_b32 s{sW}, v1")
        e("s_lshl_b32 s50, s48, 5\ns_add_u32 s50, s50, s49\ns_mul_i32 s50, s50, 40960")
        e("s_lshl_b32 s51, s48, 3\ns_lshr_b32 s52, s49, 2\ns_add_u32 s51, s51, s52\ns_lshl_b32 s51, s51, 18")
        e(f"s_lshr_b32 s{sRG}, s{sW}, 1\ns_and_b32 s{sKH}, s{sW}, 1\ns_lshl_b32 s{sW4K}, s{sW}, 12")
        e(f"s_mov_b32 s{sPASS}, 0")
        e("s_waitcnt lgkmcnt(0)")
        self.stamp(7)
        for srd, ptr, off, n in ((sQ, 40, 50, 40960), (sK, 42, 51, 262144), (sV, 44, 51, 262144), (sO, 46, 50, 40960)):
            e(f"s_add_u32 s{srd}, s{ptr}, s{off}\ns_addc_u32 s{srd+1}, s{ptr+1}, 0\ns_and_b32 s{srd+1}, s{srd+1}, 0xffff")
            e(f"s_mov_b32 s{srd+2}, {n}\ns_mov_b32 s{srd+3}, 0x20000")
        e(f"v_and_b32 v2, 15, v{VLANE}\nv_lshrrev_b32 v3, 4, v{VLANE}")
        for ee in range(2):
            e(f"v_add_u32 v4, {4*ee}, v3\nv_lshlrev_b32 v4, 1, v4\nv_xor_b32 v4, v2, v4\nv_lshlrev_b32 v4, 4, v4")
            e(f"v_lshl_add_u32 v{DVO+ee}, v3, 8, v4")
    def addrs(self):
        e = self.e
        e(f"v_and_b32 v2, 15, v{VLANE}\nv_lshrrev_b32 v3, 4, v{VLANE}")
        e(f"s_lshl_b32 s{sT}, s{sKH}, 5")
        e(f"v_and_b32 v4, 7, v2\nv_lshlrev_b32 v4, 1, v4")
        e(f"v_add_u32 v5, s{sT}, v2\nv_lshlrev_b32 v5, 8, v5")
        for ks in range(4):
            e(f"v_add_u32 v6, {4*ks}, v3\nv_xor_b32 v6, v6, v4\nv_lshl_add_u32 v{KADDR+ks}, v6, 4, v5")
        e(f"v_lshrrev_b32 v4, 2, v2")
        e(f"v_and_b32 v5, 1, v3\nv_lshl_add_u32 v5, v5, 2, v4")
        e(f"s_lshl_b32 s{sT+1}, s{sKH}, 2\nv_xor_b32 v5, s{sT+1}, v5")
        e(f"v_lshl_add_u32 v6, v3, 2, v4\nv_add_u32 v6, s{sT}, v6\nv_lshlrev_b32 v6, 8, v6")
        e(f"v_and_b32 v7, 3, v2\nv_lshl_add_u32 v6, v7, 3, v6\nv_add_u32 v6, {VRING}, v6")
        for d in range(8):
            e(f"v_xor_b32 v7, {d}, v5\nv_lshl_add_u32 v{VADDR+d}, v7, 5, v6")
        for r in range(4): e(f"v_mov_b32 v{ONES+r}, 0x3f803f80")
        for j in range(4):
            e(f"s_add_u32 s{sMK+j}, s{sW4K}, {KRING + j*16384}\ns_add_u32 s{sMV+j}, s{sW4K}, {VRING + j*16384}")
        e(f"s_add_u32 s{sDUM}, s{sW4K}, {DUMMY}")
    def dma(self, srd, soff, i4):
        return f"buffer_load_dwordx4 v{DVO + (i4 & 1)}, s[{srd}:{srd+3}], s{soff} offen offset:{1024*i4} lds"
    def q_dma(self):
        e = self.e
        e(f"s_mul_i32 s{sT}, s{sRG}, {80*256}\ns_lshl_b32 s{sT+1}, s{sKH}, 11\ns_add_u32 s{sT}, s{sT}, s{sT+1}")
        for qt in range(5):
            e(f"s_add_u32 s{sT+2}, s{sT}, {qt*4096}\ns_add_u32 m0, s{sT+2}, {QB}\ns_nop 0")
            e(self.dma(sQ, sT+2, 0)); e(self.dma(sQ, sT+2, 1))
    def kv_dma(self, which, stage, slot, n=4):
        e = self.e
        srd = sK if which == 'k' else sV
        base = (KRING if which == 'k' else VRING) + slot*16384
        e(f"s_add_u32 s{sT+3}, s{sW4K}, {stage*16384}\ns_add_u32 m0, s{sW4K}, {base}\ns_nop 0")
        for i4 in range(n): e(self.dma(srd, sT+3, i4))
    def q_read_scale(self):
        e = self.e
        e(f"s_mul_i32 s{sT}, s{sRG}, {80*256}\ns_lshl_b32 s{sT+1}, s{sKH}, 13\ns_sub_u32 s{sT}, s{sT}, s{sT+1}\ns_add_u32 s{sT}, s{sT}, {QB}")
        for ks in range(4): e(f"v_add_u32 v{TMP+ks}, s{sT}, v{KADDR+ks}")
        for qt in range(5):
            for ks in range(4):
                e(f"ds_read_b128 {vr(Q+(qt*4+ks)*4,4)}, v{TMP+ks} offset:{qt*4096}")
        e("s_waitcnt lgkmcnt(0)")
    def q_scale(self):
        e = self.e
        e(f"s_mov_b32 s{sT}, {C_SCALE:#x}\ns_mov_b32 s{sT+1}, {C_SCALE:#x}\ns_mov_b32 s{sT+2}, 0xffff0000")
        for r in range(0, 80, 4):
            for k in range(4):
                e(f"v_lshlrev_b32 v{TMP+2*k}, 16, v{Q+r+k}\nv_and_b32 v{TMP+2*k+1}, s{sT+2}, v{Q+r+k}")
            for k in range(4):
                e(f"v_pk_mul_f32 {vr(TMP+2*k,2)}, {vr(TMP+2*k,2)}, s[{sT}:{sT+1}]")
            for k in range(4):
                e(f"v_cvt_pk_bf16_f32 v{Q+r+k}, v{TMP+2*k}, v{TMP+2*k+1}")
    def zero_acc(self):
        e = self.e
        for r in range(80): e(f"v_mov_b32 v{OK+r}, 0")
        for r in range(80): e(f"v_accvgpr_write_b32 a{OS+r}, 0")
        for r in range(20): e(f"v_accvgpr_write_b32 a{LZ+r}, 0")
        for t in range(5): e(f"v_mov_b32 v{L+t}, 0")
    def kread(self, buf, slot, n):
        kt, ks = n // 4, n % 4
        return f"ds_read_b128 {ar(KF+buf*32+n*4,4)}, v{KADDR+ks} offset:{slot*16384 + kt*4096}"
    def vread(self, buf, slot, n):
        d, h2 = n // 2, n % 2
        return f"ds_read_b64_tr_b16 {ar(VF+buf*32+d*4+2*h2,2)}, v{VADDR+d} offset:{slot*16384 + h2*4096}"
    def qk(self, tile, kbuf, sb, n, cinit=None):
        kt, ks = n // 4, n % 4
        d = vr(S + sb*8 + kt*4, 4)
        c = d if ks else (cinit if cinit else "0")
        return f"{M16} {d}, {ar(KF+kbuf*32+n*4,4)}, {vr(Q+(tile*4+ks)*4,4)}, {c}"
    def pv(self, tile, vbuf, pb, dtp):
        o = oacc(tile, dtp)
        return f"{M16} {o}, {ar(VF+vbuf*32+dtp*4,4)}, {vr(P+pb*4,4)}, {o}"
    def ones(self, tile, pb):
        o = ar(LZ+tile*4, 4)
        return f"{M16} {o}, {vr(ONES,4)}, {vr(P+pb*4,4)}, {o}"
    def ex(self, sb, k): return f"v_exp_f32 v{S+sb*8+k}, v{S+sb*8+k}"
    def add(self, tile, sb, k): return f"v_add_f32 v{L+tile}, v{L+tile}, v{S+sb*8+k}"
    def cvt(self, sb, pb, m): return f"v_cvt_pk_bf16_f32 v{P+pb*4+m}, v{S+sb*8+2*m}, v{S+sb*8+2*m+1}"

    def build_template(self):
        Z = self.Z
        slots = []
        free = []
        for j in range(5):
            gaps = []
            ms = [('qk', n) for n in range(8)] + [('pv', d) for d in range(8)]
            zt = j in Z
            if zt:
                v = {3: [('c',0)], 7: [('c',1)], 11: [('c',2)], 15: [('c',3)]}
                fr = {1:'W',3:'s',5:'W',7:'s',9:'W',11:'s',13:'W',15:'s'}
            else:
                v = {3: [('a',0),('a',1)], 5: [('c',0),('a',2)], 7: [('a',3),('c',1)], 11: [('a',4),('a',5)], 13: [('c',2),('a',6)], 15: [('a',7),('c',3)]}
                fr = {1:'W', 9:'W'}
            for g in range(16):
                fill = []
                if g % 2 == 0: fill = [('e', g//2)]
                else: fill = list(v.get(g, []))
                gaps.append(dict(m=ms[g], fill=fill, slot=j, free=fr.get(g), sh=[]))
                if g == 11 and ((j-1) % 5) in Z:
                    gaps.append(dict(m=('one',), fill=[], slot=j, free='W', sh=[]))
            slots.append(gaps)
        seq = []
        order = [(1, True)] + [(j, None) for j in (2,3,4,0)] + [(1, False)]
        for j, after in order:
            for gi, gp in enumerate(slots[j]):
                if gp['free'] is None: continue
                if after is True and gi < 8: continue
                if after is False and gi >= 8: continue
                prev = (j == 0) or (after is False)
                seq.append((gp, prev, j, gi))
        nW = sum(1 for x in seq if x[0]['free'] == 'W'); nS = len(seq) - nW
        items = [('k', n) for n in range(8)] + [('v', n) for n in range(16)]
        Wpos = [i for i, x in enumerate(seq) if x[0]['free'] == 'W']
        ndma = 8
        need_W_for_ds = max(0, (24 - nS + 1)//2)
        assert nW - ndma >= need_W_for_ds or True
        dmapos = set([Wpos[0]] + Wpos[-(ndma-1):])
        di = 0; ii = 0
        over = []
        for i, (gp, prev, j, gi) in enumerate(seq):
            if i in dmapos:
                gp['fill'] = [('d', di, prev)]; di += 1
            else:
                n = 2 if gp['free'] == 'W' else 1
                take = items[ii:ii+n]; ii += n
                gp['fill'] = [(a, b, prev) for a, b in take] + gp['fill']
                for a, b in take:
                    gp.setdefault('ds', []).append((a, b))
        if ii < len(items):
            print(f"; WARNING: {len(items)-ii} DS items overflow", file=sys.stderr)
            for i, (gp, prev, j, gi) in enumerate(seq):
                if ii >= len(items): break
                if i not in dmapos and gp['free'] == 'W' and not prev:
                    a, b = items[ii]; ii += 1
                    gp['fill'] = [(a, b, prev)] + gp['fill']
        assert di == 8 and ii >= len(items)
        return slots

    def emit_gap(self, gp, s, j, do_mfma=True, skip=()):
        e = self.e
        u = 5*s + j
        m = gp['m']
        if not do_mfma: e("s_nop 0")
        if do_mfma:
            if m[0] == 'qk':
                t = (j+1) % 5; s1 = s + (1 if j == 4 else 0)
                e(self.qk(t, s1 % 2, (u+1) % 2, m[1]))
            elif m[0] == 'pv':
                t = (j-1) % 5; s0 = s - (1 if j == 0 else 0)
                e(self.pv(t, s0 % 2, (u-1) % 2, m[1]))
            else:
                t = (j-1) % 5
                e(self.ones(t, (u-1) % 2))
        for x in gp['sh']:
            e(x(s))
        for it in gp['fill']:
            k = it[0]
            if k in skip: continue
            if k == 'e': e(self.ex(u % 2, it[1]))
            elif k == 'a': e(self.add(j, u % 2, it[1]))
            elif k == 'c': e(self.cvt(u % 2, u % 2, it[1]))
            else:
                sw = s - (1 if it[2] else 0)
                if k == 'k': e(self.kread((sw+1) % 2, (sw+1) % 4, it[1]))
                elif k == 'v': e(self.vread((sw+1) % 2, (sw+1) % 4, it[1]))
                elif k == 'd':
                    n = it[1]
                    e(self.dma(sK if n < 4 else sV, sSOFF, n % 4))

    def finish_template(self, slots):
        flat = [(j, gi, gp) for j in range(5) for gi, gp in enumerate(slots[j])]
        g7 = slots[1][7]
        g7['sh'].append(lambda s: "s_waitcnt vmcnt(16) lgkmcnt(0)\ns_barrier")
        slots[1][2]['sh'].append(lambda s: f"s_add_u32 s{sSOFF}, s{sSOFF}, 16384")
        slots[1][4]['sh'].append(lambda s: f"s_cmp_lt_u32 s{sSOFF}, 262144")
        slots[1][5]['sh'].append(lambda s: f"s_cselect_b32 s{sMKC}, s{sMK + s % 4}, s{sDUM}")
        slots[1][6]['sh'].append(lambda s: f"s_cselect_b32 s{sMVN}, s{sMV + s % 4}, s{sDUM}")
        slots[1][8]['sh'].append(lambda s: f"s_mov_b32 m0, s{sMKC}")
        order = [(1, 8, 99)] + [(j, 0, 99) for j in (2,3,4,0)] + [(1, 0, 8)]
        seq = []
        for j, a, b in order:
            for gi, gp in enumerate(slots[j]):
                if a <= gi < b: seq.append(gp)
        idx = [i for i, gp in enumerate(seq) if any(it[0] == 'd' and it[1] == 4 for it in gp['fill'])][0]
        assert not any(it[0] == 'd' for it in seq[idx-1]['fill'])
        seq[idx-1]['sh'].append(lambda s: f"s_mov_b32 m0, s{sMVN}")
        lastk = max(i for i, gp in enumerate(seq) if any(it[0] == 'k' for it in gp['fill']))
        endi = [i for i, gp in enumerate(seq) if gp is slots[3][-1]][0]
        assert lastk <= endi, "K read after deadline"
        cnt = 0
        gpk = seq[lastk]; its = gpk['fill']; lk = max(i for i, it in enumerate(its) if it[0] == 'k')
        cnt += sum(1 for it in its[lk+1:] if it[0] in 'kv')
        for gp in seq[lastk+1:endi+1]: cnt += sum(1 for it in gp['fill'] if it[0] in 'kv')
        self.kwait = min(cnt, 15)
        self.slot3_tail = f"s_waitcnt lgkmcnt({self.kwait})"
        lastv = max(i for i, gp in enumerate(seq) if any(it[0] == 'v' for it in gp['fill']))
        self.sched_info = dict(lastk=(lastk, seq[lastk]['slot']), lastv=(lastv, seq[lastv]['slot']), kwait=self.kwait)

    def emit_slot(self, slots, s, j, g0=0, g1=99, do_mfma=True, skip=(), skipm=()):
        for gi, gp in enumerate(slots[j]):
            if g0 <= gi < g1:
                self.emit_gap(gp, s, j, do_mfma=do_mfma and gp['m'][0] not in skipm, skip=skip)
        if j == 3 and g1 >= len(slots[j]): self.e(self.slot3_tail)

    def fast_path(self):
        e = self.e
        slots = self.build_template(); self.finish_template(slots); self.slots = slots
        e.c(f"schedule: {self.sched_info}")
        e.c("prologue")
        self.q_dma()
        for st in range(3):
            self.kv_dma('k', st, st); self.kv_dma('v', st, st)
        self.kv_dma('k', 3, 3)
        self.stamp(8)
        self.addrs()
        self.zero_acc()
        if self.dbg == 2:
            e("s_waitcnt vmcnt(36)")
            self.stamp(9)
        e("s_waitcnt vmcnt(28)\ns_barrier")
        self.stamp(1)
        self.q_read_scale()
        e("s_barrier")
        self.kv_dma('v', 3, 3, n=3)
        self.q_scale()
        e("s_waitcnt vmcnt(23)\ns_barrier")
        for n in range(8): e(self.kread(0, 0, n))
        for n in range(16): e(self.vread(0, 0, n))
        e(f"s_add_u32 s{sSOFF}, s{sW4K}, {3*16384}")
        e("s_waitcnt lgkmcnt(15)\ns_waitcnt lgkmcnt(0)")
        for n in range(8): e(self.qk(0, 0, 0, n))
        for n in range(8): e(self.qk(1, 0, 1, n))
        e("s_nop 7")
        for k in range(8): e(self.ex(0, k))
        e("s_nop 0")
        if 0 not in self.Z:
            for k in range(8): e(self.add(0, 0, k))
        for m in range(4): e(self.cvt(0, 0, m))
        e("s_nop 1")
        self.stamp(2)
        self.cstamp(0)
        e("s_branch L_entry")
        e(".p2align 6")
        e.label("L_top")
        h2 = [gi for gi, gp in enumerate(slots[0]) if gp['m'][0] != 'qk'][0]
        self.emit_slot(slots, 0, 0, g0=h2)
        e.label("L_entry")
        for s in range(4):
            for j in range(5):
                if s == 0 and j == 0: continue
                if s == 3 and j == 4:
                    e(f"s_cmp_ge_u32 s{sSOFF}, {19*16384}\ns_cbranch_scc1 L_tail")
                self.emit_slot(slots, s, j)
        self.emit_slot(slots, 4, 0, g1=h2)
        e("s_branch L_top")
        e.label("L_tail")
        self.emit_slot(slots, 3, 4, skip=('k','v','d'), skipm=('qk',))
        e("s_nop 1")
        h2 = [gi for gi, gp in enumerate(slots[0]) if gp['m'][0] != 'qk'][0]
        for gp in slots[0][h2:]:
            self.emit_gap(dict(m=gp['m'], fill=[], sh=[]), 4, 0)

    def epilogue(self):
        e = self.e
        e.label("L_epi")
        self.stamp(3)
        self.cstamp(1)
        e("s_nop 7\ns_nop 7")
        for t in range(5):
            if t in self.Z:
                e(f"v_accvgpr_read_b32 v{L+t}, a{LZ+4*t}")
            else:
                e(f"v_mov_b32 v1, v{L+t}\ns_nop 1\nv_permlane32_swap_b32 v1, v{L+t}\ns_nop 1\nv_add_f32 v{L+t}, v{L+t}, v1")
                e(f"v_mov_b32 v1, v{L+t}\ns_nop 1\nv_permlane16_swap_b32 v1, v{L+t}\ns_nop 1\nv_add_f32 v{L+t}, v{L+t}, v1")
        e(f"s_mul_i32 s{sT}, s{sW}, 20480\ns_xor_b32 s{sT+1}, s{sW}, 1\ns_mul_i32 s{sT+2}, s{sT+1}, 20480")
        e(f"v_lshlrev_b32 v2, 4, v{VLANE}\nv_add_u32 v3, s{sT+2}, v2\nv_add_u32 v2, s{sT}, v2")
        e(f"s_mul_i32 s{sT}, s{sW}, 1280\ns_mul_i32 s{sT+2}, s{sT+1}, 1280")
        e(f"v_lshlrev_b32 v4, 2, v{VLANE}\nv_add_u32 v4, {LXCH}, v4\nv_add_u32 v5, s{sT+2}, v4\nv_add_u32 v4, s{sT}, v4")
        for t in range(5): e(f"ds_write_b32 v4, v{L+t} offset:{t*256}")
        for n in range(20): e(f"ds_write_b128 v2, {ar(OS+4*n,4)} offset:{XCH + n*1024}")
        e("s_waitcnt vmcnt(0) lgkmcnt(0)\ns_barrier")
        self.stamp(4)
        for t in range(5): e(f"ds_read_b32 v{TMP+t}, v5 offset:{t*256}")
        for n in range(20): e(f"ds_read_b128 {vr(Q+4*n,4)}, v3 offset:{XCH + n*1024}")
        e(f"v_and_b32 v6, 15, v{VLANE}\nv_lshrrev_b32 v7, 4, v{VLANE}")
        e(f"s_mul_i32 s{sT}, s{sW}, 10240\ns_add_u32 s{sT}, s{sT}, {TRN}")
        e(f"v_lshlrev_b32 v1, 7, v6\nv_add_u32 v1, s{sT}, v1\nv_and_b32 v2, 1, v7\nv_lshl_add_u32 v1, v2, 3, v1")
        e(f"v_lshrrev_b32 v2, 1, v7\nv_and_b32 v3, 7, v6\nv_xor_b32 v2, v2, v3")
        for x in range(4):
            e(f"v_xor_b32 v3, {2*x}, v2\nv_lshl_add_u32 v{TMP+8+x}, v3, 4, v1")
        e(f"v_lshrrev_b32 v2, 3, v{VLANE}\nv_and_b32 v3, 7, v{VLANE}\nv_xor_b32 v4, v2, v3\nv_lshlrev_b32 v4, 4, v4\nv_lshl_add_u32 v4, v2, 7, v4\nv_add_u32 v{TMP+12}, s{sT}, v4")
        e(f"s_mul_i32 s{sT+1}, s{sRG}, {80*256}\ns_lshl_b32 s{sT+2}, s{sKH}, 7\ns_add_u32 s{sT+1}, s{sT+1}, s{sT+2}")
        e(f"v_lshlrev_b32 v3, 4, v3\nv_lshl_add_u32 v3, v2, 8, v3\nv_add_u32 v{TMP+13}, s{sT+1}, v3")
        e("s_waitcnt lgkmcnt(15)")
        e(f"s_mov_b32 s{sT+4}, {f32bits(self.lo):#x}\ns_mov_b32 s{sT+5}, {f32bits(self.hi):#x}")
        e("s_mov_b64 s[56:57], 0")
        for t in range(5):
            e(f"v_add_f32 v{L+t}, v{L+t}, v{TMP+t}")
            e(f"v_cmp_nle_f32 vcc, s{sT+4}, v{L+t}\ns_or_b64 s[56:57], s[56:57], vcc")
            e(f"v_cmp_nge_f32 vcc, s{sT+5}, v{L+t}\ns_or_b64 s[56:57], s[56:57], vcc")
            e(f"v_rcp_f32 v{L+t}, v{L+t}")
        e("s_waitcnt lgkmcnt(0)")
        for qt in range(5):
            e(f"v_mov_b32 v{TMP+14}, v{L+qt}\nv_mov_b32 v{TMP+15}, v{L+qt}")
            for x in range(4):
                o = OK + (qt*4+x)*4; r = Q + (qt*4+x)*4
                e(f"v_pk_add_f32 {vr(o,2)}, {vr(o,2)}, {vr(r,2)}\nv_pk_add_f32 {vr(o+2,2)}, {vr(o+2,2)}, {vr(r+2,2)}")
                e(f"v_pk_mul_f32 {vr(o,2)}, {vr(o,2)}, {vr(TMP+14,2)}\nv_pk_mul_f32 {vr(o+2,2)}, {vr(o+2,2)}, {vr(TMP+14,2)}")
                e(f"v_cvt_pk_bf16_f32 v{o}, v{o}, v{o+1}\nv_cvt_pk_bf16_f32 v{o+1}, v{o+2}, v{o+3}")
                e(f"ds_write_b64 v{TMP+8+x}, {vr(o,2)} offset:{qt*2048}")
        e("s_waitcnt lgkmcnt(0)")
        for n in range(10):
            e(f"ds_read_b128 {vr(Q+4*n,4)}, v{TMP+12} offset:{n*1024}")
        for n in range(10):
            e(f"s_waitcnt lgkmcnt({9-n})")
            e(f"s_mov_b32 s{sT+6}, {n*2048}")
            e(f"buffer_store_dwordx4 {vr(Q+4*n,4)}, v{TMP+13}, s[{sO}:{sO+3}], s{sT+6} offen {self.stflags}")
        self.stamp(5)
        if self.dbg:
            e("s_waitcnt vmcnt(0)")
            self.stamp(6)
            e("s_waitcnt lgkmcnt(0)")
            self.dump_stamps(7)
        e(f"s_cmp_lg_u32 s{sPASS}, 0\ns_cbranch_scc1 L_end")
        e("s_cmp_lg_u64 s[56:57], 0\ns_cselect_b32 s58, 1, 0")
        e(f"s_lshl_b32 s59, s{sW}, 2\ns_add_u32 s59, s59, {FLG}\nv_mov_b32 v1, s59\nv_mov_b32 v2, s58\nds_write_b32 v1, v2")
        e(f"s_waitcnt lgkmcnt(0)\ns_barrier\nv_mov_b32 v1, {FLG}\nds_read_b128 v[4:7], v1\ns_waitcnt lgkmcnt(0)")
        e("v_or_b32 v4, v4, v5\nv_or_b32 v6, v6, v7\nv_or_b32 v4, v4, v6\ns_nop 1\nv_readfirstlane_b32 s58, v4\ns_nop 3\ns_cmp_eq_u32 s58, 0\ns_cbranch_scc1 L_end")
        e("s_waitcnt vmcnt(0)\ns_barrier")
        e("s_branch L_slow")

    def slow_path(self):
        e = self.e
        CI, MX = 224+8, 224+28
        mx = [252, 253, 254, 255, 34]
        e.label("L_slow")
        e(f"s_mov_b32 s{sPASS}, 1")
        self.q_dma()
        self.addrs()
        e("s_waitcnt vmcnt(0)\ns_barrier")
        self.q_read_scale()
        self.q_scale()
        for t in range(5): e(f"v_mov_b32 v{mx[t]}, 0xff800000")
        e(f"s_mov_b32 s{sSOFF}, s{sW4K}")
        e.label("L_smax")
        e(f"s_barrier\ns_mov_b32 m0, s{sMK}\ns_nop 0")
        for i4 in range(4): e(self.dma(sK, sSOFF, i4))
        e("s_waitcnt vmcnt(0)\ns_barrier")
        for n in range(8): e(self.kread(0, 0, n))
        e("s_waitcnt lgkmcnt(0)")
        for t in range(5):
            for n in range(8): e(self.qk(t, 0, 0, n))
            e("s_nop 7\ns_nop 1")
            for k in range(0, 8, 2): e(f"v_max3_f32 v{mx[t]}, v{mx[t]}, v{S+k}, v{S+k+1}")
            e("s_nop 3")
        e(f"s_add_u32 s{sSOFF}, s{sSOFF}, 16384\ns_cmp_lt_u32 s{sSOFF}, 262144\ns_cbranch_scc1 L_smax")
        for t in range(5):
            m = mx[t]
            e(f"v_mov_b32 v1, v{m}\ns_nop 1\nv_permlane32_swap_b32 v1, v{m}\ns_nop 1\nv_max_f32 v{m}, v{m}, v1")
            e(f"v_mov_b32 v1, v{m}\ns_nop 1\nv_permlane16_swap_b32 v1, v{m}\ns_nop 1\nv_max_f32 v{m}, v{m}, v1")
        e(f"s_xor_b32 s{sT+1}, s{sW}, 1\ns_mul_i32 s{sT}, s{sW}, 1280\ns_mul_i32 s{sT+2}, s{sT+1}, 1280")
        e(f"v_lshlrev_b32 v4, 2, v{VLANE}\nv_add_u32 v4, {LXCH}, v4\nv_add_u32 v5, s{sT+2}, v4\nv_add_u32 v4, s{sT}, v4")
        e("s_barrier")
        for t in range(5): e(f"ds_write_b32 v4, v{mx[t]} offset:{t*256}")
        e("s_waitcnt lgkmcnt(0)\ns_barrier")
        for t in range(5): e(f"ds_read_b32 v{S+t}, v5 offset:{t*256}")
        e("s_waitcnt lgkmcnt(0)")
        for t in range(5):
            e(f"v_max_f32 v{mx[t]}, v{mx[t]}, v{S+t}")
            for r in range(4): e(f"v_sub_f32 v{CI+4*t+r}, 0, v{mx[t]}")
        self.zero_acc()
        e(f"s_mov_b32 s{sSOFF}, s{sW4K}")
        e.label("L_smain")
        e(f"s_barrier\ns_mov_b32 m0, s{sMK}\ns_nop 0")
        for i4 in range(4): e(self.dma(sK, sSOFF, i4))
        e(f"s_mov_b32 m0, s{sMV}\ns_nop 0")
        for i4 in range(4): e(self.dma(sV, sSOFF, i4))
        e("s_waitcnt vmcnt(0)\ns_barrier")
        for n in range(8): e(self.kread(0, 0, n))
        e("s_waitcnt lgkmcnt(0)")
        for n in range(16): e(self.vread(0, 0, n))
        e("s_waitcnt lgkmcnt(15)\ns_waitcnt lgkmcnt(0)")
        for t in range(5):
            for n in range(8): e(self.qk(t, 0, 0, n, cinit=vr(CI+4*t, 4)))
            e("s_nop 7\ns_nop 1")
            for k in range(8): e(self.ex(0, k))
            e("s_nop 0")
            if t not in self.Z:
                for k in range(8): e(self.add(t, 0, k))
            for m in range(4): e(self.cvt(0, 0, m))
            e("s_nop 1")
            for d in range(8): e(self.pv(t, 0, 0, d))
            if t in self.Z: e(self.ones(t, 0))
            e("s_nop 3")
        e(f"s_add_u32 s{sSOFF}, s{sSOFF}, 16384\ns_cmp_lt_u32 s{sSOFF}, 262144\ns_cbranch_scc1 L_smain")
        e("s_barrier")
        e("s_branch L_epi")

    def build(self):
        e = self.e
        self.setup()
        if self.fast:
            self.fast_path()
        else:
            self.addrs()
            e("s_branch L_slow")
        self.epilogue()
        self.slow_path()
        e.label("L_end")
        e("s_endpgm")
        hdr = HEADER + "; @launch grid=(256,1,1) block=(256,1,1) lds=163840\n"
        hdr += f""".amdgcn_target "amdgcn-amd-amdhsa--gfx950"
.text
.globl {KNAME}
.p2align 8
.type {KNAME},@function
{KNAME}:
"""
        ftr = f"""
.section .rodata,"a"
.p2align 6
.amdhsa_kernel {KNAME}
  .amdhsa_next_free_vgpr 512
  .amdhsa_next_free_sgpr 102
  .amdhsa_accum_offset 256
  .amdhsa_group_segment_fixed_size 0
  .amdhsa_kernarg_size 48
  .amdhsa_user_sgpr_count 2
  .amdhsa_user_sgpr_kernarg_segment_ptr 1
  .amdhsa_system_sgpr_workgroup_id_x 1
.end_amdhsa_kernel
"""
        return hdr + e.text() + "\n" + ftr

if __name__ == "__main__":
    ap = argparse.ArgumentParser()
    ap.add_argument("--slow", action="store_true")
    ap.add_argument("--Z", default="2,3")
    ap.add_argument("--lo", type=float, default=2.0**-6)
    ap.add_argument("--hi", type=float, default=2.0**100)
    ap.add_argument("--dbg", type=int, default=0)
    ap.add_argument("--st", default="")
    ap.add_argument("-o", default="out.s")
    a = ap.parse_args()
    Z = tuple(int(x) for x in a.Z.split(",") if x != "")
    g = Gen(Z=Z, fast=not a.slow, lo=a.lo, hi=a.hi, dbg=a.dbg)
    g.stflags = a.st.replace("+", " ")
    open(a.o, "w").write(g.build())
```

```python
import sys, argparse
from common import *

sQ, sK, sV, sO = 4, 8, 12, 16
sW, sRG, sKH, sW4K, sSOFF, sPASS = 20, 21, 22, 23, 24, 26
sQ0 = 27
sT = 48
KADDR, VADDR, DVO, ONES, L, VLANE = 8, 12, 20, 24, 28, 33
S, P, Q, OK = 36, 52, 64, 144
TMP = 224
OS, KF, VF, LZ = 0, 80, 144, 208
KRING, VRING, QB = 0, 65536, 122880
XCH, LXCH, TRN, FLG = 0, 81920, 98304, 147456
M16 = "v_mfma_f32_16x16x32_bf16"

def oacc(qt, dtp):
    if dtp < 4: return vr(OK + (qt*4+dtp)*4, 4)
    return ar(OS + (qt*4+dtp-4)*4, 4)

class Stream:
    def __init__(self): self.it = []
    def __call__(self, text):
        for l in text.split("\n"):
            l = l.strip()
            if l: self.it.append(dict(t=l))
    def c(self, s): self.it.append(dict(t="; " + s))
    def label(self, s): self.it.append(dict(t=s + ":"))
    def vm(self, text, tag): self.it.append(dict(t=text, vm=tag))
    def lg(self, text, tag): self.it.append(dict(t=text, lg=tag))
    def wait(self, vm=None, lg=None): self.it.append(dict(wait=True, wvm=vm, wlg=lg))
    def mark(self, name): self.it.append(dict(mark=name))
    def joined(self, name): self.it.append(dict(reset=True, t="; " + name))
    def resolve(self):
        vm = []; lg = []
        for x in self.it:
            if x.get('reset'): vm = []; lg = []
            if 'vm' in x: vm.append(x['vm'])
            if 'lg' in x: lg.append(x['lg'])
            if x.get('wait'):
                parts = []
                for name, want, hist, mx in (("vmcnt", x['wvm'], vm, 63), ("lgkmcnt", x['wlg'], lg, 15)):
                    if want is None: continue
                    if want == 'all': n = 0
                    else:
                        idx = [i for i, tg in enumerate(hist) if tg in want]
                        missing = [w for w in want if w not in hist]
                        assert not missing, f"wait on unissued {missing}"
                        n = len(hist) - 1 - max(idx)
                    parts.append(f"{name}({min(n, mx)})")
                x['t'] = "s_waitcnt " + " ".join(parts)
    def texts(self, a=None, b=None):
        on = a is None; out = []
        for x in self.it:
            if 'mark' in x:
                if x['mark'] == a: on = True
                elif x['mark'] == b: break
                continue
            if on: out.append(x['t'])
        return out

class Gen:
    def __init__(self, Z=(2,3), fast=True, dbg=0, lo=2.0**-6, hi=2.0**100, st="sc1", opts=None):
        self.e = Stream(); self.Z = set(Z); self.fast = fast; self.dbg = dbg; self.lo = lo; self.hi = hi
        self.stflags = st; self.o = opts or {}
    def stamp(self, k):
        if self.dbg: self.e(f"s_memrealtime s[{64+2*k}:{65+2*k}]")
    def cstamp(self, k):
        if self.dbg == 2: self.e(f"s_memtime s[{84+2*k}:{85+2*k}]")
    def dump_stamps(self, n):
        if not self.dbg: return
        e = self.e
        if self.dbg == 2:
            e("s_load_dwordx2 s[90:91], s[0:1], 40\ns_waitcnt lgkmcnt(0)")
            e("s_mov_b32 s92, s90\ns_and_b32 s93, s91, 0xffff\ns_mov_b32 s94, 0x100000\ns_mov_b32 s95, 0x20000")
            e(f"s_lshl_b32 s98, s2, 2\ns_add_u32 s98, s98, s{sW}\ns_lshl_b32 s98, s98, 6")
            e(f"v_cmp_eq_u32 vcc, 0, v{VLANE}\ns_and_saveexec_b64 s[96:97], vcc\ns_cbranch_execz L_nodump")
            e("v_mov_b32 v3, s98")
            for k in range(10):
                e(f"v_mov_b32 v1, s{64+2*k}\nbuffer_store_dword v1, v3, s[92:95], 0 offen offset:{4*k}")
            for k in range(2):
                e(f"v_mov_b32 v1, s{84+2*k}\nbuffer_store_dword v1, v3, s[92:95], 0 offen offset:{40+4*k}")
            e("s_waitcnt vmcnt(0)")
            e.label("L_nodump")
            e("s_mov_b64 exec, s[96:97]")
            return
        e("s_load_dwordx2 s[90:91], s[0:1], 32\ns_waitcnt lgkmcnt(0)")
        e("s_mov_b32 s92, s90\ns_and_b32 s93, s91, 0xffff\ns_mov_b32 s94, 256\ns_mov_b32 s95, 0x20000")
        e(f"v_cmp_eq_u32 vcc, 0, v{VLANE}\ns_and_saveexec_b64 s[96:97], vcc\ns_cbranch_execz L_nodump")
        for k in range(n):
            e(f"v_mov_b32 v1, s{64+2*k}\nv_not_b32 v2, v1\nv_mov_b32 v3, {8*k}")
            e(f"buffer_atomic_umax v1, v3, s[92:95], 0 offen\nbuffer_atomic_umax v2, v3, s[92:95], 0 offen offset:4\ns_waitcnt vmcnt(0)")
        e.label("L_nodump")
        e("s_mov_b64 exec, s[96:97]")

    def setup(self):
        e = self.e
        e("s_cmp_ge_u32 s2, 256\ns_cbranch_scc1 L_end")
        self.stamp(0)
        e("s_load_dwordx4 s[40:43], s[0:1], 0\ns_load_dwordx4 s[44:47], s[0:1], 16")
        e(f"v_lshrrev_b32 v1, 6, v0\nv_and_b32 v{VLANE}, 63, v0")
        e("s_and_b32 s48, s2, 7\ns_lshr_b32 s49, s2, 3")
        e(f"v_readfirstlane_b32 s{sW}, v1")
        e("s_lshl_b32 s50, s48, 5\ns_add_u32 s50, s50, s49\ns_mul_i32 s50, s50, 40960")
        e("s_lshl_b32 s51, s48, 3\ns_lshr_b32 s52, s49, 2\ns_add_u32 s51, s51, s52\ns_lshl_b32 s51, s51, 18")
        e(f"v_and_b32 v2, 15, v{VLANE}\nv_lshrrev_b32 v3, 4, v{VLANE}")
        for ee in range(2):
            e(f"v_add_u32 v4, {4*ee}, v3\nv_lshlrev_b32 v4, 1, v4\nv_xor_b32 v4, v2, v4\nv_lshlrev_b32 v4, 4, v4")
            e(f"v_lshl_add_u32 v{DVO+ee}, v3, 8, v4")
        e(f"s_lshr_b32 s{sRG}, s{sW}, 1\ns_and_b32 s{sKH}, s{sW}, 1\ns_lshl_b32 s{sW4K}, s{sW}, 12")
        e(f"s_mul_i32 s{sQ0}, s{sRG}, {80*256}\ns_lshl_b32 s53, s{sKH}, 11\ns_add_u32 s{sQ0}, s{sQ0}, s53")
        e(f"s_mov_b32 s{sPASS}, 0")
        for srd, n in ((sQ, 40960), (sK, 262144), (sV, 262144), (sO, 40960)):
            e(f"s_mov_b32 s{srd+2}, {n}\ns_mov_b32 s{srd+3}, 0x20000")
        e("s_waitcnt lgkmcnt(0)")
        self.stamp(7)
        for srd, ptr, off in ((sQ, 40, 50), (sK, 42, 51), (sV, 44, 51), (sO, 46, 50)):
            e(f"s_add_u32 s{srd}, s{ptr}, s{off}\ns_addc_u32 s{srd+1}, s{ptr+1}, 0\ns_and_b32 s{srd+1}, s{srd+1}, 0xffff")
    def addrs(self):
        e = self.e
        e(f"v_and_b32 v2, 15, v{VLANE}\nv_lshrrev_b32 v3, 4, v{VLANE}")
        e(f"s_lshl_b32 s{sT}, s{sKH}, 5")
        e("v_and_b32 v4, 7, v2\nv_lshlrev_b32 v4, 1, v4")
        e(f"v_add_u32 v5, s{sT}, v2\nv_lshlrev_b32 v5, 8, v5")
        for ks in range(4):
            e(f"v_add_u32 v6, {4*ks}, v3\nv_xor_b32 v6, v6, v4\nv_lshl_add_u32 v{KADDR+ks}, v6, 4, v5")
        e("v_lshrrev_b32 v4, 2, v2")
        e("v_and_b32 v5, 1, v3\nv_lshl_add_u32 v5, v5, 2, v4")
        e(f"s_lshl_b32 s{sT+1}, s{sKH}, 2\nv_xor_b32 v5, s{sT+1}, v5")
        e(f"v_lshl_add_u32 v6, v3, 2, v4\nv_add_u32 v6, s{sT}, v6\nv_lshlrev_b32 v6, 8, v6")
        e(f"v_and_b32 v7, 3, v2\nv_lshl_add_u32 v6, v7, 3, v6\nv_add_u32 v6, {VRING}, v6")
        for d in range(8):
            e(f"v_xor_b32 v7, {d}, v5\nv_lshl_add_u32 v{VADDR+d}, v7, 5, v6")
        for r in range(4): e(f"v_mov_b32 v{ONES+r}, 0x3f803f80")
        e(f"s_mul_i32 s{sT}, s{sRG}, {80*256}\ns_lshl_b32 s{sT+1}, s{sKH}, 13\ns_sub_u32 s{sT}, s{sT}, s{sT+1}\ns_add_u32 s{sT}, s{sT}, {QB}")
        for ks in range(4): e(f"v_add_u32 v{TMP+16+ks}, s{sT}, v{KADDR+ks}")
        e(f"s_mov_b32 s{sT+8}, {C_SCALE:#x}\ns_mov_b32 s{sT+9}, {C_SCALE:#x}\ns_mov_b32 s{sT+10}, 0xffff0000")

    def dma_text(self, srd, soff, i4):
        fl = self.o.get('ldq', '') if srd == sQ else self.o.get('ldkv', '')
        return f"buffer_load_dwordx4 v{DVO + (i4 & 1)}, s[{srd}:{srd+3}], s{soff} offen offset:{1024*i4} {fl} lds"
    def make_queue(self):
        D = []
        def q(qt):
            pre = [f"s_add_u32 s{sT+2}, s{sQ0}, {qt*4096}", f"s_add_u32 m0, s{sT+2}, {QB}"]
            for i in range(2): D.append(dict(t=self.dma_text(sQ, sT+2, i), tag=('Q', qt), pre=pre if i == 0 else []))
        def kv(w, st):
            base = (KRING if w == 'K' else VRING) + (st % 4)*16384
            pre = []
            if w == 'K': pre.append(f"s_add_u32 s{sSOFF}, s{sW4K}, 0" if st == 0 else f"s_add_u32 s{sSOFF}, s{sSOFF}, 16384")
            pre.append(f"s_add_u32 m0, s{sW4K}, {base}")
            for i in range(4): D.append(dict(t=self.dma_text(sK if w == 'K' else sV, sSOFF, i), tag=(w, st), pre=pre if i == 0 else []))
        q(0); kv('K', 0); q(1); kv('V', 0); q(2); q(3); q(4)
        for st in range(1, 18):
            kv('K', st); kv('V', st)
        self.D = D; self.dn = 0
    def issue_inline(self, n):
        e = self.e
        for _ in range(n):
            d = self.D[self.dn]; self.dn += 1
            if d['pre']:
                for p in d['pre']: e(p)
                e("s_nop 0")
            e.vm(d['t'], d['tag'])

    def kread(self, buf, slot, n):
        kt, ks = n // 4, n % 4
        return f"ds_read_b128 {ar(KF+buf*32+n*4,4)}, v{KADDR+ks} offset:{slot*16384 + kt*4096}"
    def vread(self, buf, slot, n):
        d, h2 = n // 2, n % 2
        return f"ds_read_b64_tr_b16 {ar(VF+buf*32+d*4+2*h2,2)}, v{VADDR+d} offset:{slot*16384 + h2*4096}"
    def qk(self, tile, kbuf, sb, n, cinit=None):
        kt, ks = n // 4, n % 4
        d = vr(S + sb*8 + kt*4, 4)
        c = d if ks else (cinit if cinit else "0")
        return f"{M16} {d}, {ar(KF+kbuf*32+n*4,4)}, {vr(Q+(tile*4+ks)*4,4)}, {c}"
    def pv(self, tile, vbuf, pb, dtp, first=False):
        o = oacc(tile, dtp)
        return f"{M16} {o}, {ar(VF+vbuf*32+dtp*4,4)}, {vr(P+pb*4,4)}, {'0' if first else o}"
    def ones(self, tile, pb, first=False):
        o = ar(LZ+tile*4, 4)
        return f"{M16} {o}, {vr(ONES,4)}, {vr(P+pb*4,4)}, {'0' if first else o}"
    def ex(self, sb, k): return f"v_exp_f32 v{S+sb*8+k}, v{S+sb*8+k}"
    def add(self, tile, sb, k, first=False):
        if first and k == 0: return f"v_mov_b32 v{L+tile}, v{S+sb*8+k}"
        return f"v_add_f32 v{L+tile}, v{L+tile}, v{S+sb*8+k}"
    def cvt(self, sb, pb, m): return f"v_cvt_pk_bf16_f32 v{P+pb*4+m}, v{S+sb*8+2*m}, v{S+sb*8+2*m+1}"
    def xwrite(self, t, x): return f"ds_write_b128 v2, {ar(OS+(t*4+x)*4,4)} offset:{XCH + (t*4+x)*1024}"

    def template(self):
        Z = self.Z
        slots = []
        for j in range(5):
            gaps = []
            ms = [('qk', n) for n in range(8)] + [('pv', d) for d in range(8)]
            if j in Z:
                v = {3: [('c',0)], 7: [('c',1)], 11: [('c',2)], 15: [('c',3)]}
                fr = {1:'W',3:'s',5:'W',7:'s',9:'W',11:'s',13:'W',15:'s'}
            else:
                v = {3: [('a',0),('a',1)], 5: [('c',0),('a',2)], 7: [('a',3),('c',1)], 11: [('a',4),('a',5)], 13: [('c',2),('a',6)], 15: [('a',7),('c',3)]}
                fr = {1:'W', 9:'W'}
            for g in range(16):
                fill = [('e', g//2)] if g % 2 == 0 else list(v.get(g, []))
                gaps.append(dict(m=ms[g], fill=fill, free=fr.get(g), g=g))
                if g == 11 and ((j-1) % 5) in Z:
                    gaps.append(dict(m=('one',), fill=[], free='W', g=None))
            slots.append(gaps)
        seq = []
        for j, a, b, prev in [(1, 8, 99, False), (2,0,99,False), (3,0,99,False), (4,0,99,False), (0,0,99,True), (1,0,8,True)]:
            for gi, gp in enumerate(slots[j]):
                if gp['free'] and a <= (gp['g'] if gp['g'] is not None else 12) < b: seq.append((gp, prev, j))
        items = [('k', n) for n in range(8)] + [('v', n) for n in range(16)]
        Wpos = [i for i, x in enumerate(seq) if x[0]['free'] == 'W']
        dmapos = set([Wpos[0]] + Wpos[-7:])
        ii = 0
        for i, (gp, prev, j) in enumerate(seq):
            gp['prev'] = prev
            if i in dmapos: gp['dma'] = True
            else:
                n = 2 if gp['free'] == 'W' else 1
                gp['ds'] = items[ii:ii+n]; ii += n
        assert ii >= len(items), "DS items overflow"
        return slots

    def slot_gaps(self, s, j, drop=(), nomfma=(), first=False, pvorder=None, feed=True):
        u = 5*s + j
        out = []
        pvi = 0
        for gp in self.T[j]:
            m = gp['m']; mt = None
            if m[0] not in nomfma:
                if m[0] == 'qk':
                    t = (j+1) % 5; s1 = s + (1 if j == 4 else 0)
                    mt = self.qk(t, s1 % 2, (u+1) % 2, m[1])
                elif m[0] == 'pv':
                    t = (j-1) % 5; s0 = s - (1 if j == 0 else 0)
                    d = pvorder[m[1]] if pvorder else m[1]
                    mt = self.pv(t, s0 % 2, (u-1) % 2, d, first=(u-1 < 5))
                else:
                    mt = self.ones((j-1) % 5, (u-1) % 2, first=(u-1 < 5))
            fill = []
            w = s - (1 if gp.get('prev') else 0)
            for (k, n) in gp.get('ds', []):
                if k in drop or w + 1 > 15 or w < self.first_window: continue
                if k == 'k': fill.append((self.kread((w+1) % 2, (w+1) % 4, n), 'lg', ('Kf', w+1)))
                else: fill.append((self.vread((w+1) % 2, (w+1) % 4, n), 'lg', ('Vf', w+1)))
            for it in gp['fill']:
                k = it[0]
                if k == 'e': fill.append((self.ex(u % 2, it[1]), 'v', None))
                elif k == 'a': fill.append((self.add(j, u % 2, it[1], first=(u < 5)), 'v', None))
                elif k == 'c': fill.append((self.cvt(u % 2, u % 2, it[1]), 'v', None))
            g = dict(m=mt, sh=[], fill=fill, g=gp['g'], free=gp['free'], dma=bool(gp.get('dma')) and 'd' not in drop and feed, empty=(not fill))
            out.append(g)
        return out

    def feed_dma(self, gaps, hist):
        for gi, g in enumerate(gaps):
            if g['dma'] and self.dn < len(self.D):
                d = self.D[self.dn]; self.dn += 1
                allg = hist + gaps[:gi]
                if d['pre']:
                    p1 = allg[-1]; assert not p1.get('hasdma'), "DMA directly before group start"
                    assert not p1.get('done')
                    p1['sh'].append(d['pre'][-1])
                    if len(d['pre']) > 1:
                        p2 = allg[-2]
                        if p2.get('hasdma') or p2.get('done'): p1['sh'].insert(0, d['pre'][0])
                        else: p2['sh'].append(d['pre'][0])
                g['fill'] = [(d['t'], 'vm', d['tag'])]; g['hasdma'] = True
    def emit_gaps(self, gaps):
        e = self.e
        for g in gaps:
            g['done'] = True
            if g['m']: e(g['m'])
            elif g.get('nop', True): e("s_nop 0")
            for x in g['sh']:
                if callable(x): x()
                else: e(x)
            for (t, k, tag) in g['fill']:
                if k == 'lg': e.lg(t, tag)
                elif k == 'vm': e.vm(t, tag)
                else: e(t)
            for x in g.get('post', []):
                if callable(x): x()
                else: e(x)

    def q_prep(self, qt, extra_reads=None):
        e = self.e
        for ks in range(4):
            e.lg(f"ds_read_b128 {vr(Q+(qt*4+ks)*4,4)}, v{TMP+16+ks} offset:{qt*4096}", ('Qf', qt))
        if extra_reads: extra_reads()
        e.wait(lg=[('Qf', qt)])
        for r in range(0, 16, 4):
            b = Q + qt*16 + r
            for k in range(4):
                e(f"v_lshlrev_b32 v{TMP+2*k}, 16, v{b+k}\nv_and_b32 v{TMP+2*k+1}, s{sT+10}, v{b+k}")
            for k in range(4):
                e(f"v_pk_mul_f32 {vr(TMP+2*k,2)}, {vr(TMP+2*k,2)}, s[{sT+8}:{sT+9}]")
            for k in range(4):
                e(f"v_cvt_pk_bf16_f32 v{b+k}, v{TMP+2*k}, v{TMP+2*k+1}")

    def fast_path(self):
        e = self.e
        self.T = self.template()
        self.make_queue()
        self.first_window = 1
        pend = []
        self.issue_inline(14)
        self.stamp(8)
        self.addrs()
        for t in range(5): pass
        e.wait(vm=[('Q',0), ('K',0)]); e("s_barrier")
        self.stamp(1)
        self.issue_inline(6)
        def rk0():
            for n in range(8): e.lg(self.kread(0, 0, n), ('Kf', 0))
        self.q_prep(0, rk0)
        e.wait(lg=[('Kf', 0)])
        e("s_nop 0")
        for n in range(8): e(self.qk(0, 0, 0, n))
        plan = {0: (2, [('Q',1)]), 1: (6, [('Q',2), ('V',0)]), 2: (2, [('Q',3)]), 3: (2, [('Q',4)])}
        hist = []
        for j in range(4):
            n_iss, tags = plan[j]
            e.wait(vm=tags); e("s_barrier")
            self.issue_inline(n_iss)
            def rv0():
                for n in range(16): e.lg(self.vread(0, 0, n), ('Vf', 0))
            self.q_prep(j+1, rv0 if j == 1 else None)
            if j == 1: e.wait(lg=[('Vf', 0)])
            e("s_nop 1")
            gaps = self.slot_gaps(0, j, drop=('k','v') + (('d',) if j < 3 else ()), nomfma=('pv','one') if j == 0 else ())
            if j == 3:
                for g in gaps: g['dma'] = g['dma'] and g['g'] == 13
            self.feed_dma(gaps, [])
            self.emit_gaps(gaps)
        e.wait(vm=[('K',1)]); e("s_barrier")
        self.issue_inline(4)
        for n in range(8): e.lg(self.kread(1, 1, n), ('Kf', 1))
        e.wait(lg=[('Kf', 1)])
        gaps = self.slot_gaps(0, 4, drop=('k','v'))
        self.feed_dma(gaps, []); self.emit_gaps(gaps)
        e.wait(vm=[('V',1)]); e("s_barrier")
        self.issue_inline(4)
        for n in range(16): e.lg(self.vread(1, 1, n), ('Vf', 1))
        self.stamp(2); self.cstamp(0)
        def step(s, tail=False):
            gaps_all = []
            for j in range(5):
                kw = {}
                if s >= 14: kw['feed'] = False
                if s == 15 and j >= 1: kw['pvorder'] = [4,5,6,7,0,1,2,3]
                if s == 15 and j == 4: break
                gaps = self.slot_gaps(s, j, **kw)
                if j == 1:
                    g7 = gaps[7]
                    if s < 15:
                        g7['sh'].append(lambda s=s: (e.wait(vm=[('K', s+1), ('V', s+1)], lg='all'), e("s_barrier")))
                    else:
                        g7['sh'].append(lambda s=s: (e.wait(vm='all', lg='all'), e("s_barrier")))
                    if s == 1:
                        g7['sh'].append(lambda: self.issue_inline(3))
                if j == 3 and s < 15:
                    gaps[-1].setdefault('post', []).append(lambda s=s: e.wait(lg=[('Kf', s+1)]))
                if s == 15 and j in (2, 3):
                    ws = [g for g in gaps if g['free'] == 'W' and g['empty']][:4]
                    for x, g in enumerate(ws): g['fill'] = [(self.xwrite(j-2, x), 'lg', ('Xw', j-2))]
                gaps_all.append(gaps)
            flat = []
            for gaps in gaps_all:
                flat += gaps
            return flat
        def emit_step(s):
            flat = step(s)
            if s == 1:
                bi = [i for i, g in enumerate(flat) if g['sh']][0]
                self.feed_dma(flat[:bi+1], [])
                self.emit_gaps(flat[:bi+1])
                self.feed_dma(flat[bi+1:], flat[:bi+1][-2:])
                self.emit_gaps(flat[bi+1:])
            else:
                self.feed_dma(flat, self.lastgaps)
                self.emit_gaps(flat)
            self.lastgaps = []
        emit_step(1)
        assert self.dn == 55, self.dn
        for s in range(2, 14):
            if (s - 2) % 4 == 0: e.mark(f"it{(s-2)//4}")
            emit_step(s)
        e.mark("it3")
        emit_step(14)
        e(f"s_mul_i32 s{sT}, s{sW}, 20480\ns_xor_b32 s{sT+1}, s{sW}, 1\ns_mul_i32 s{sT+2}, s{sT+1}, 20480")
        e(f"v_lshlrev_b32 v2, 4, v{VLANE}\nv_add_u32 v3, s{sT+2}, v2\nv_add_u32 v2, s{sT}, v2")
        e(f"s_mul_i32 s{sT}, s{sW}, 1280\ns_mul_i32 s{sT+2}, s{sT+1}, 1280")
        e(f"v_lshlrev_b32 v4, 2, v{VLANE}\nv_add_u32 v4, {LXCH}, v4\nv_add_u32 v5, s{sT+2}, v4\nv_add_u32 v4, s{sT}, v4")
        emit_step(15)
        u = 79; order = [4,5,6,7,0,1,2,3]
        ms = [self.pv(3, 1, (u-1) % 2, d) for d in order]
        if 3 in self.Z: ms.insert(4, self.ones(3, (u-1) % 2))
        va = []
        for k in range(8):
            va.append([self.ex(u % 2, k)])
        seqv = []
        zt = 4 in self.Z
        for k in range(8):
            grp = [self.ex(u % 2, k)]
            if k >= 1 and not zt: grp.append(self.add(4, u % 2, k-1))
            if k >= 2 and k % 2 == 0: grp.append(self.cvt(u % 2, u % 2, k//2 - 1))
            seqv.append(grp)
        xw = [self.xwrite(2, x) for x in range(4)]
        e("s_nop 1")
        for i, m in enumerate(ms):
            e(m)
            if i in (1, 3, 5, 7): e.lg(xw[(i-1)//2], ('Xw', 2))
            if i < 8:
                for t in seqv[i]: e(t)
        e("s_nop 0")
        if not zt: e(self.add(4, u % 2, 7))
        e(self.cvt(u % 2, u % 2, 3))
        addt = [t for t in range(5) if t not in self.Z]
        lred = []
        for sw in ("v_permlane32_swap_b32", "v_permlane16_swap_b32"):
            lred += [f"v_mov_b32 v{TMP+8+i}, v{L+t}" for i, t in enumerate(addt)]
            lred += ["s_nop 0"] * max(0, 3 - len(addt))
            lred += [f"{sw} v{TMP+8+i}, v{L+t}" for i, t in enumerate(addt)]
            lred += ["s_nop 0"]
            lred += [f"v_add_f32 v{L+t}, v{L+t}, v{TMP+8+i}" for i, t in enumerate(addt)]
        e("s_nop 1")
        ms = [self.pv(4, 1, u % 2, d) for d in order]
        if 4 in self.Z: ms.insert(4, self.ones(4, u % 2))
        xw = [self.xwrite(3, x) for x in range(4)]
        li = 0
        for i, m in enumerate(ms):
            e(m)
            if i in (0, 2, 4, 6): e.lg(xw[i//2], ('Xw', 3))
            for _ in range(3):
                if li < len(lred) and i >= 1: e(lred[li]); li += 1
        while li < len(lred): e(lred[li]); li += 1
        e("s_nop 3")
        for x in range(4): e.lg(self.xwrite(4, x), ('Xw', 4))
        self.stamp(3); self.cstamp(1)
        e("s_nop 3")
        for t in range(5):
            if t in self.Z: e(f"v_accvgpr_read_b32 v{L+t}, a{LZ+4*t}")
        e("s_branch L_fin")

    def epi_slow(self):
        e = self.e
        e.label("L_epi_slow")
        e("s_nop 7\ns_nop 7")
        for t in range(5):
            if t not in self.Z:
                e(f"v_mov_b32 v1, v{L+t}\ns_nop 1\nv_permlane32_swap_b32 v1, v{L+t}\ns_nop 1\nv_add_f32 v{L+t}, v{L+t}, v1")
                e(f"v_mov_b32 v1, v{L+t}\ns_nop 1\nv_permlane16_swap_b32 v1, v{L+t}\ns_nop 1\nv_add_f32 v{L+t}, v{L+t}, v1")
            else:
                e(f"v_accvgpr_read_b32 v{L+t}, a{LZ+4*t}")
        e(f"s_mul_i32 s{sT}, s{sW}, 20480\ns_xor_b32 s{sT+1}, s{sW}, 1\ns_mul_i32 s{sT+2}, s{sT+1}, 20480")
        e(f"v_lshlrev_b32 v2, 4, v{VLANE}\nv_add_u32 v3, s{sT+2}, v2\nv_add_u32 v2, s{sT}, v2")
        e(f"s_mul_i32 s{sT}, s{sW}, 1280\ns_mul_i32 s{sT+2}, s{sT+1}, 1280")
        e(f"v_lshlrev_b32 v4, 2, v{VLANE}\nv_add_u32 v4, {LXCH}, v4\nv_add_u32 v5, s{sT+2}, v4\nv_add_u32 v4, s{sT}, v4")
        for t in range(5):
            for x in range(4): e(self.xwrite(t, x))
    def final(self):
        e = self.e
        e.label("L_fin")
        e.joined("final")
        for t in range(5): e(f"ds_write_b32 v4, v{L+t} offset:{t*256}")
        e(f"v_and_b32 v6, 15, v{VLANE}\nv_lshrrev_b32 v7, 4, v{VLANE}")
        e(f"s_mul_i32 s{sT}, s{sW}, 10240\ns_add_u32 s{sT}, s{sT}, {TRN}")
        e(f"v_lshlrev_b32 v1, 7, v6\nv_add_u32 v1, s{sT}, v1\nv_and_b32 v{TMP+20}, 1, v7\nv_lshl_add_u32 v1, v{TMP+20}, 3, v1")
        e(f"v_lshrrev_b32 v{TMP+20}, 1, v7\nv_and_b32 v{TMP+21}, 7, v6\nv_xor_b32 v{TMP+20}, v{TMP+20}, v{TMP+21}")
        for x in range(4):
            e(f"v_xor_b32 v{TMP+21}, {2*x}, v{TMP+20}\nv_lshl_add_u32 v{TMP+16+x}, v{TMP+21}, 4, v1")
        e(f"v_lshrrev_b32 v6, 3, v{VLANE}\nv_and_b32 v7, 7, v{VLANE}\nv_xor_b32 v1, v6, v7\nv_lshlrev_b32 v1, 4, v1\nv_lshl_add_u32 v1, v6, 7, v1\nv_add_u32 v{TMP+22}, s{sT}, v1")
        e(f"s_mul_i32 s{sT+1}, s{sRG}, {80*256}\ns_lshl_b32 s{sT+2}, s{sKH}, 7\ns_add_u32 s{sT+1}, s{sT+1}, s{sT+2}")
        e(f"v_lshlrev_b32 v7, 4, v7\nv_lshl_add_u32 v7, v6, 8, v7\nv_add_u32 v{TMP+23}, s{sT+1}, v7")
        e(f"s_mov_b32 s{sT+4}, {f32bits(self.lo):#x}\ns_mov_b32 s{sT+5}, {f32bits(self.hi):#x}")
        e("s_mov_b64 s[56:57], 0")
        e.wait(lg='all'); e("s_barrier")
        self.stamp(4)
        for t in range(5): e.lg(f"ds_read_b32 v{TMP+24+t}, v5 offset:{t*256}", ('l', 0))
        for t in range(5):
            for x in range(4):
                e.lg(f"ds_read_b128 {vr(Q+(t*4+x)*4,4)}, v3 offset:{XCH + (t*4+x)*1024}", ('Xr', t))
            if t == 1:
                e.wait(lg=[('l', 0)])
                for tt in range(5):
                    e(f"v_add_f32 v{L+tt}, v{L+tt}, v{TMP+24+tt}")
                for tt in range(5):
                    e(f"v_cmp_nle_f32 vcc, s{sT+4}, v{L+tt}\ns_or_b64 s[56:57], s[56:57], vcc")
                    e(f"v_cmp_nge_f32 vcc, s{sT+5}, v{L+tt}\ns_or_b64 s[56:57], s[56:57], vcc")
                    e(f"v_rcp_f32 v{TMP+2*tt}, v{L+tt}")
        RB = S
        def stores(t):
            e.wait(lg=[('Rb', t)])
            for h in range(2):
                e(f"s_mov_b32 s{sT+6+h}, {(t*2+h)*2048}")
            for h in range(2):
                e.vm(f"buffer_store_dwordx4 {vr(RB+(t%2)*8+4*h,4)}, v{TMP+23}, s[{sO}:{sO+3}], s{sT+6+h} offen {self.stflags}", ('St', t))
        for t in range(5):
            e.wait(lg=[('Xr', t)])
            rinv = vr(TMP+2*t, 2)
            for x in range(4):
                o = OK + (t*4+x)*4; r = Q + (t*4+x)*4
                e(f"v_pk_add_f32 {vr(o,2)}, {vr(o,2)}, {vr(r,2)}\nv_pk_add_f32 {vr(o+2,2)}, {vr(o+2,2)}, {vr(r+2,2)}")
            for x in range(4):
                o = OK + (t*4+x)*4
                e(f"v_pk_mul_f32 {vr(o,2)}, {vr(o,2)}, {rinv} op_sel_hi:[1,0]\nv_pk_mul_f32 {vr(o+2,2)}, {vr(o+2,2)}, {rinv} op_sel_hi:[1,0]")
            for x in range(4):
                o = OK + (t*4+x)*4
                e(f"v_cvt_pk_bf16_f32 v{o}, v{o}, v{o+1}\nv_cvt_pk_bf16_f32 v{o+1}, v{o+2}, v{o+3}")
                e.lg(f"ds_write_b64 v{TMP+16+x}, {vr(o,2)} offset:{t*2048}", ('Tw', t))
            if t >= 2: pass
            if t >= 1: stores(t-1)
            for h in range(2):
                e.lg(f"ds_read_b128 {vr(RB+(t%2)*8+4*h,4)}, v{TMP+22} offset:{(t*2+h)*1024}", ('Rb', t))
        stores(4)
        self.stamp(5)
        if self.dbg:
            e("s_waitcnt vmcnt(0)")
            self.stamp(6)
            e("s_waitcnt lgkmcnt(0)")
            self.dump_stamps(8)
        e(f"s_cmp_lg_u32 s{sPASS}, 0\ns_cbranch_scc1 L_end")
        e("s_cmp_lg_u64 s[56:57], 0\ns_cselect_b32 s58, 1, 0")
        e(f"s_lshl_b32 s59, s{sW}, 2\ns_add_u32 s59, s59, {FLG}\nv_mov_b32 v1, s59\nv_mov_b32 v2, s58\nds_write_b32 v1, v2")
        e(f"s_waitcnt lgkmcnt(0)\ns_barrier\nv_mov_b32 v1, {FLG}\nds_read_b128 v[4:7], v1\ns_waitcnt lgkmcnt(0)")
        e("v_or_b32 v4, v4, v5\nv_or_b32 v6, v6, v7\nv_or_b32 v4, v4, v6\ns_nop 1\nv_readfirstlane_b32 s58, v4\ns_nop 3\ns_cmp_eq_u32 s58, 0\ns_cbranch_scc1 L_end")
        e("s_waitcnt vmcnt(0)\ns_barrier")

    def slow_path(self):
        e = self.e
        CI = 232
        mx = [252, 253, 254, 255, 34]
        e.label("L_slow")
        e.joined("slow")
        e(f"s_mov_b32 s{sPASS}, 1")
        for qt in range(5):
            e(f"s_add_u32 s{sT+2}, s{sQ0}, {qt*4096}\ns_add_u32 m0, s{sT+2}, {QB}\ns_nop 0")
            e(self.dma_text(sQ, sT+2, 0)); e(self.dma_text(sQ, sT+2, 1))
        self.addrs()
        e("s_waitcnt vmcnt(0)\ns_barrier")
        for qt in range(5): self.q_prep(qt)
        for t in range(5): e(f"v_mov_b32 v{mx[t]}, 0xff800000")
        e(f"s_mov_b32 s{sSOFF}, s{sW4K}")
        e.label("L_smax")
        e(f"s_barrier\ns_add_u32 m0, s{sW4K}, {KRING}\ns_nop 0")
        for i4 in range(4): e(self.dma_text(sK, sSOFF, i4))
        e("s_waitcnt vmcnt(0)\ns_barrier")
        for n in range(8): e(self.kread(0, 0, n))
        e("s_waitcnt lgkmcnt(0)")
        for t in range(5):
            for n in range(8): e(self.qk(t, 0, 0, n))
            e("s_nop 7\ns_nop 1")
            for k in range(0, 8, 2): e(f"v_max3_f32 v{mx[t]}, v{mx[t]}, v{S+k}, v{S+k+1}")
            e("s_nop 3")
        e(f"s_add_u32 s{sSOFF}, s{sSOFF}, 16384\ns_cmp_lt_u32 s{sSOFF}, 262144\ns_cbranch_scc1 L_smax")
        for t in range(5):
            m = mx[t]
            e(f"v_mov_b32 v1, v{m}\ns_nop 1\nv_permlane32_swap_b32 v1, v{m}\ns_nop 1\nv_max_f32 v{m}, v{m}, v1")
            e(f"v_mov_b32 v1, v{m}\ns_nop 1\nv_permlane16_swap_b32 v1, v{m}\ns_nop 1\nv_max_f32 v{m}, v{m}, v1")
        e(f"s_xor_b32 s{sT+1}, s{sW}, 1\ns_mul_i32 s{sT}, s{sW}, 1280\ns_mul_i32 s{sT+2}, s{sT+1}, 1280")
        e(f"v_lshlrev_b32 v4, 2, v{VLANE}\nv_add_u32 v4, {LXCH}, v4\nv_add_u32 v5, s{sT+2}, v4\nv_add_u32 v4, s{sT}, v4")
        e("s_barrier")
        for t in range(5): e(f"ds_write_b32 v4, v{mx[t]} offset:{t*256}")
        e("s_waitcnt lgkmcnt(0)\ns_barrier")
        for t in range(5): e(f"ds_read_b32 v{S+t}, v5 offset:{t*256}")
        e("s_waitcnt lgkmcnt(0)")
        for t in range(5):
            e(f"v_max_f32 v{mx[t]}, v{mx[t]}, v{S+t}")
            for r in range(4): e(f"v_sub_f32 v{CI+4*t+r}, 0, v{mx[t]}")
        for r in range(80): e(f"v_mov_b32 v{OK+r}, 0")
        for r in range(80): e(f"v_accvgpr_write_b32 a{OS+r}, 0")
        for r in range(20): e(f"v_accvgpr_write_b32 a{LZ+r}, 0")
        for t in range(5): e(f"v_mov_b32 v{L+t}, 0")
        e(f"s_mov_b32 s{sSOFF}, s{sW4K}")
        e.label("L_smain")
        e(f"s_barrier\ns_add_u32 m0, s{sW4K}, {KRING}\ns_nop 0")
        for i4 in range(4): e(self.dma_text(sK, sSOFF, i4))
        e(f"s_add_u32 m0, s{sW4K}, {VRING}\ns_nop 0")
        for i4 in range(4): e(self.dma_text(sV, sSOFF, i4))
        e("s_waitcnt vmcnt(0)\ns_barrier")
        for n in range(8): e(self.kread(0, 0, n))
        e("s_waitcnt lgkmcnt(0)")
        for n in range(16): e(self.vread(0, 0, n))
        e("s_waitcnt lgkmcnt(0)")
        for t in range(5):
            for n in range(8): e(self.qk(t, 0, 0, n, cinit=vr(CI+4*t, 4)))
            e("s_nop 7\ns_nop 1")
            for k in range(8): e(self.ex(0, k))
            e("s_nop 0")
            if t not in self.Z:
                for k in range(8): e(self.add(t, 0, k))
            for m in range(4): e(self.cvt(0, 0, m))
            e("s_nop 1")
            for d in range(8): e(self.pv(t, 0, 0, d))
            if t in self.Z: e(self.ones(t, 0))
            e("s_nop 3")
        e(f"s_add_u32 s{sSOFF}, s{sSOFF}, 16384\ns_cmp_lt_u32 s{sSOFF}, 262144\ns_cbranch_scc1 L_smain")
        e("s_barrier")

    def build(self, unroll=False):
        e = self.e
        self.setup()
        if self.fast: self.fast_path()
        else: e("s_branch L_slow")
        e.mark("epi")
        e("s_branch L_fin")
        self.slow_path()
        self.epi_slow()
        self.final()
        e("s_branch L_slow")
        e.label("L_end")
        e("s_endpgm")
        e.resolve()
        if self.fast:
            pre = e.texts(None, "it0"); its = [e.texts(f"it{k}", f"it{k+1}") for k in range(3)]
            post = e.texts("it3", None)
            assert its[0] == its[1] == its[2], "loop iterations differ"
            if unroll: body = pre + its[0] + its[1] + its[2] + post
            else:
                body = pre + [".p2align 6", "L_top:"] + its[0] + [f"s_cmp_lt_u32 s{sSOFF}, {17*16384}", "s_cbranch_scc1 L_top"] + post
        else: body = e.texts()
        txt = "\n".join(l if (l.endswith(":") or l.startswith(";") or l.startswith(".")) else "    " + l for l in body)
        hdr = HEADER + "; @launch grid=(256,1,1) block=(256,1,1) lds=163840\n"
        hdr += f""".amdgcn_target "amdgcn-amd-amdhsa--gfx950"
.text
.globl {KNAME}
.p2align 8
.type {KNAME},@function
{KNAME}:
"""
        ftr = f"""
.section .rodata,"a"
.p2align 6
.amdhsa_kernel {KNAME}
  .amdhsa_next_free_vgpr 512
  .amdhsa_next_free_sgpr 102
  .amdhsa_accum_offset 256
  .amdhsa_group_segment_fixed_size 0
  .amdhsa_kernarg_size 48
  .amdhsa_user_sgpr_count 2
  .amdhsa_user_sgpr_kernarg_segment_ptr 1
  .amdhsa_system_sgpr_workgroup_id_x 1
.end_amdhsa_kernel
"""
        return hdr + txt + "\n" + ftr

if __name__ == "__main__":
    ap = argparse.ArgumentParser()
    ap.add_argument("--slow", action="store_true")
    ap.add_argument("--Z", default="2,3")
    ap.add_argument("--lo", type=float, default=2.0**-6)
    ap.add_argument("--hi", type=float, default=2.0**100)
    ap.add_argument("--dbg", type=int, default=0)
    ap.add_argument("--st", default="sc1")
    ap.add_argument("--unroll", action="store_true")
    ap.add_argument("--ldq", default="")
    ap.add_argument("--ldkv", default="")
    ap.add_argument("-o", default="out.s")
    a = ap.parse_args()
    Z = tuple(int(x) for x in a.Z.split(",") if x != "")
    g = Gen(Z=Z, fast=not a.slow, lo=a.lo, hi=a.hi, dbg=a.dbg, st=a.st.replace("+", " "), opts=dict(ldq=a.ldq, ldkv=a.ldkv))
    open(a.o, "w").write(g.build(unroll=a.unroll))
```

```python
import sys, argparse
from common import *

sQ, sK, sV, sO = 4, 8, 12, 16
sW, sRG, sKH, sW4K, sSOFF, sPASS = 20, 21, 22, 23, 24, 26
sQ0 = 27
sT = 48
KADDR, VADDR, DVO, ONES, L, VLANE = 8, 12, 20, 24, 28, 33
S, P, Q, OK = 36, 52, 64, 144
TMP = 224
OS, KF, VF, LZ = 0, 80, 144, 208
KRING, VRING, QB = 0, 65536, 122880
XCH, LXCH, TRN, FLG = 0, 81920, 98304, 147456
M16 = "v_mfma_f32_16x16x32_bf16"

def oacc(qt, dtp):
    if dtp < 4: return vr(OK + (qt*4+dtp)*4, 4)
    return ar(OS + (qt*4+dtp-4)*4, 4)

class Stream:
    def __init__(self): self.it = []
    def __call__(self, text):
        for l in text.split("\n"):
            l = l.strip()
            if l: self.it.append(dict(t=l))
    def c(self, s): self.it.append(dict(t="; " + s))
    def label(self, s): self.it.append(dict(t=s + ":"))
    def vm(self, text, tag): self.it.append(dict(t=text, vm=tag))
    def lg(self, text, tag): self.it.append(dict(t=text, lg=tag))
    def wait(self, vm=None, lg=None): self.it.append(dict(wait=True, wvm=vm, wlg=lg))
    def mark(self, name): self.it.append(dict(mark=name))
    def joined(self, name): self.it.append(dict(reset=True, t="; " + name))
    def resolve(self):
        vm = []; lg = []
        for x in self.it:
            if x.get('reset'): vm = []; lg = []
            if 'vm' in x: vm.append(x['vm'])
            if 'lg' in x: lg.append(x['lg'])
            if x.get('wait'):
                parts = []
                for name, want, hist, mx in (("vmcnt", x['wvm'], vm, 63), ("lgkmcnt", x['wlg'], lg, 15)):
                    if want is None: continue
                    if want == 'all': n = 0
                    else:
                        idx = [i for i, tg in enumerate(hist) if tg in want]
                        missing = [w for w in want if w not in hist]
                        assert not missing, f"wait on unissued {missing}"
                        n = len(hist) - 1 - max(idx)
                    parts.append(f"{name}({min(n, mx)})")
                x['t'] = "s_waitcnt " + " ".join(parts)
    def texts(self, a=None, b=None):
        on = a is None; out = []
        for x in self.it:
            if 'mark' in x:
                if x['mark'] == a: on = True
                elif x['mark'] == b: break
                continue
            if on: out.append(x['t'])
        return out

class Gen:
    def __init__(self, Z=(2,3), fast=True, dbg=0, lo=2.0**-6, hi=2.0**100, st="sc1", opts=None):
        self.e = Stream(); self.Z = set(Z); self.fast = fast; self.dbg = dbg; self.lo = lo; self.hi = hi
        self.stflags = st; self.o = opts or {}
    def stamp(self, k):
        if self.dbg: self.e(f"s_memrealtime s[{64+2*k}:{65+2*k}]")
    def cstamp(self, k):
        if self.dbg == 2: self.e(f"s_memtime s[{84+2*k}:{85+2*k}]")
    def dump_stamps(self, n):
        if not self.dbg: return
        e = self.e
        if self.dbg == 2:
            e("s_load_dwordx2 s[90:91], s[0:1], 40\ns_waitcnt lgkmcnt(0)")
            e("s_mov_b32 s92, s90\ns_and_b32 s93, s91, 0xffff\ns_mov_b32 s94, 0x100000\ns_mov_b32 s95, 0x20000")
            e(f"s_lshl_b32 s98, s2, 2\ns_add_u32 s98, s98, s{sW}\ns_lshl_b32 s98, s98, 6")
            e(f"v_cmp_eq_u32 vcc, 0, v{VLANE}\ns_and_saveexec_b64 s[96:97], vcc\ns_cbranch_execz L_nodump")
            e("v_mov_b32 v3, s98")
            for k in range(10):
                e(f"v_mov_b32 v1, s{64+2*k}\nbuffer_store_dword v1, v3, s[92:95], 0 offen offset:{4*k}")
            for k in range(2):
                e(f"v_mov_b32 v1, s{84+2*k}\nbuffer_store_dword v1, v3, s[92:95], 0 offen offset:{40+4*k}")
            e("s_waitcnt vmcnt(0)")
            e.label("L_nodump")
            e("s_mov_b64 exec, s[96:97]")
            return
        e("s_load_dwordx2 s[90:91], s[0:1], 32\ns_waitcnt lgkmcnt(0)")
        e("s_mov_b32 s92, s90\ns_and_b32 s93, s91, 0xffff\ns_mov_b32 s94, 256\ns_mov_b32 s95, 0x20000")
        e(f"v_cmp_eq_u32 vcc, 0, v{VLANE}\ns_and_saveexec_b64 s[96:97], vcc\ns_cbranch_execz L_nodump")
        for k in range(n):
            e(f"v_mov_b32 v1, s{64+2*k}\nv_not_b32 v2, v1\nv_mov_b32 v3, {8*k}")
            e(f"buffer_atomic_umax v1, v3, s[92:95], 0 offen\nbuffer_atomic_umax v2, v3, s[92:95], 0 offen offset:4\ns_waitcnt vmcnt(0)")
        e.label("L_nodump")
        e("s_mov_b64 exec, s[96:97]")

    def setup(self):
        e = self.e
        e("s_cmp_ge_u32 s2, 256\ns_cbranch_scc1 L_end")
        self.stamp(0)
        e("s_load_dwordx4 s[40:43], s[0:1], 0\ns_load_dwordx4 s[44:47], s[0:1], 16")
        e(f"v_lshrrev_b32 v1, 6, v0\nv_and_b32 v{VLANE}, 63, v0")
        e("s_and_b32 s48, s2, 7\ns_lshr_b32 s49, s2, 3")
        e(f"v_readfirstlane_b32 s{sW}, v1")
        e("s_lshl_b32 s50, s48, 5\ns_add_u32 s50, s50, s49\ns_mul_i32 s50, s50, 40960")
        e("s_lshl_b32 s51, s48, 3\ns_lshr_b32 s52, s49, 2\ns_add_u32 s51, s51, s52\ns_lshl_b32 s51, s51, 18")
        e(f"v_and_b32 v2, 15, v{VLANE}\nv_lshrrev_b32 v3, 4, v{VLANE}")
        for ee in range(2):
            e(f"v_add_u32 v4, {4*ee}, v3\nv_lshlrev_b32 v4, 1, v4\nv_xor_b32 v4, v2, v4\nv_lshlrev_b32 v4, 4, v4")
            e(f"v_lshl_add_u32 v{DVO+ee}, v3, 8, v4")
        e(f"s_lshr_b32 s{sRG}, s{sW}, 1\ns_and_b32 s{sKH}, s{sW}, 1\ns_lshl_b32 s{sW4K}, s{sW}, 12")
        e(f"s_mul_i32 s{sQ0}, s{sRG}, {80*256}\ns_lshl_b32 s53, s{sKH}, 11\ns_add_u32 s{sQ0}, s{sQ0}, s53")
        e(f"s_mov_b32 s{sPASS}, 0")
        for srd, n in ((sQ, 40960), (sK, 262144), (sV, 262144), (sO, 40960)):
            e(f"s_mov_b32 s{srd+2}, {n}\ns_mov_b32 s{srd+3}, 0x20000")
        e("s_waitcnt lgkmcnt(0)")
        self.stamp(7)
        for srd, ptr, off in ((sQ, 40, 50), (sK, 42, 51), (sV, 44, 51), (sO, 46, 50)):
            e(f"s_add_u32 s{srd}, s{ptr}, s{off}\ns_addc_u32 s{srd+1}, s{ptr+1}, 0\ns_and_b32 s{srd+1}, s{srd+1}, 0xffff")
    def addrs(self):
        e = self.e
        e(f"v_and_b32 v2, 15, v{VLANE}\nv_lshrrev_b32 v3, 4, v{VLANE}")
        e(f"s_lshl_b32 s{sT}, s{sKH}, 5")
        e("v_and_b32 v4, 7, v2\nv_lshlrev_b32 v4, 1, v4")
        e(f"v_add_u32 v5, s{sT}, v2\nv_lshlrev_b32 v5, 8, v5")
        for ks in range(4):
            e(f"v_add_u32 v6, {4*ks}, v3\nv_xor_b32 v6, v6, v4\nv_lshl_add_u32 v{KADDR+ks}, v6, 4, v5")
        e("v_lshrrev_b32 v4, 2, v2")
        e("v_and_b32 v5, 1, v3\nv_lshl_add_u32 v5, v5, 2, v4")
        e(f"s_lshl_b32 s{sT+1}, s{sKH}, 2\nv_xor_b32 v5, s{sT+1}, v5")
        e(f"v_lshl_add_u32 v6, v3, 2, v4\nv_add_u32 v6, s{sT}, v6\nv_lshlrev_b32 v6, 8, v6")
        e(f"v_and_b32 v7, 3, v2\nv_lshl_add_u32 v6, v7, 3, v6\nv_add_u32 v6, {VRING}, v6")
        for d in range(8):
            e(f"v_xor_b32 v7, {d}, v5\nv_lshl_add_u32 v{VADDR+d}, v7, 5, v6")
        for r in range(4): e(f"v_mov_b32 v{ONES+r}, 0x3f803f80")
        e(f"s_mul_i32 s{sT}, s{sRG}, {80*256}\ns_lshl_b32 s{sT+1}, s{sKH}, 13\ns_sub_u32 s{sT}, s{sT}, s{sT+1}\ns_add_u32 s{sT}, s{sT}, {QB}")
        for ks in range(4): e(f"v_add_u32 v{TMP+16+ks}, s{sT}, v{KADDR+ks}")
        e(f"s_mov_b32 s{sT+8}, {C_SCALE:#x}\ns_mov_b32 s{sT+9}, {C_SCALE:#x}\ns_mov_b32 s{sT+10}, 0xffff0000")

    def dma_text(self, srd, soff, i4):
        fl = self.o.get('ldq', '') if srd == sQ else self.o.get('ldkv', '')
        return f"buffer_load_dwordx4 v{DVO + (i4 & 1)}, s[{srd}:{srd+3}], s{soff} offen offset:{1024*i4} {fl} lds"
    def make_queue(self):
        D = []
        def q(qt):
            pre = [f"s_add_u32 s{sT+2}, s{sQ0}, {qt*4096}", f"s_add_u32 m0, s{sT+2}, {QB}"]
            for i in range(2): D.append(dict(t=self.dma_text(sQ, sT+2, i), tag=('Q', qt), pre=pre if i == 0 else []))
        def kv(w, st):
            base = (KRING if w == 'K' else VRING) + (st % 4)*16384
            pre = []
            if w == 'K': pre.append(f"s_add_u32 s{sSOFF}, s{sW4K}, 0" if st == 0 else f"s_add_u32 s{sSOFF}, s{sSOFF}, 16384")
            pre.append(f"s_add_u32 m0, s{sW4K}, {base}")
            for i in range(4): D.append(dict(t=self.dma_text(sK if w == 'K' else sV, sSOFF, i), tag=(w, st), pre=pre if i == 0 else []))
        q(0); kv('K', 0); q(1); kv('V', 0); q(2); q(3); q(4)
        for st in range(1, 18):
            kv('K', st); kv('V', st)
        self.D = D; self.dn = 0
    def issue_inline(self, n):
        e = self.e
        for _ in range(n):
            d = self.D[self.dn]; self.dn += 1
            if d['pre']:
                for p in d['pre']: e(p)
                e("s_nop 0")
            e.vm(d['t'], d['tag'])

    def kread(self, buf, slot, n):
        kt, ks = n // 4, n % 4
        return f"ds_read_b128 {ar(KF+buf*32+n*4,4)}, v{KADDR+ks} offset:{slot*16384 + kt*4096}"
    def vread(self, buf, slot, n):
        d, h2 = n // 2, n % 2
        return f"ds_read_b64_tr_b16 {ar(VF+buf*32+d*4+2*h2,2)}, v{VADDR+d} offset:{slot*16384 + h2*4096}"
    def qk(self, tile, kbuf, sb, n, cinit=None):
        kt, ks = n // 4, n % 4
        d = vr(S + sb*8 + kt*4, 4)
        c = d if ks else (cinit if cinit else "0")
        return f"{M16} {d}, {ar(KF+kbuf*32+n*4,4)}, {vr(Q+(tile*4+ks)*4,4)}, {c}"
    def pv(self, tile, vbuf, pb, dtp, first=False):
        o = oacc(tile, dtp)
        return f"{M16} {o}, {ar(VF+vbuf*32+dtp*4,4)}, {vr(P+pb*4,4)}, {'0' if first else o}"
    def ones(self, tile, pb, first=False):
        o = ar(LZ+tile*4, 4)
        return f"{M16} {o}, {vr(ONES,4)}, {vr(P+pb*4,4)}, {'0' if first else o}"
    def ex(self, sb, k): return f"v_exp_f32 v{S+sb*8+k}, v{S+sb*8+k}"
    def add(self, tile, sb, k, first=False):
        if first and k == 0: return f"v_mov_b32 v{L+tile}, v{S+sb*8+k}"
        return f"v_add_f32 v{L+tile}, v{L+tile}, v{S+sb*8+k}"
    def cvt(self, sb, pb, m): return f"v_cvt_pk_bf16_f32 v{P+pb*4+m}, v{S+sb*8+2*m}, v{S+sb*8+2*m+1}"
    def xwrite(self, t, x): return f"ds_write_b128 v2, {ar(OS+(t*4+x)*4,4)} offset:{XCH + (t*4+x)*1024}"

    def template(self):
        Z = self.Z
        slots = []
        for j in range(5):
            gaps = []
            ms = [('qk', n) for n in range(8)] + [('pv', d) for d in range(8)]
            if j in Z:
                v = {3: [('c',0)], 7: [('c',1)], 11: [('c',2)], 15: [('c',3)]}
                fr = {1:'W',3:'s',5:'W',7:'s',9:'W',11:'s',13:'W',15:'s'}
            else:
                v = {3: [('a',0),('a',1)], 5: [('c',0),('a',2)], 7: [('a',3),('c',1)], 11: [('a',4),('a',5)], 13: [('c',2),('a',6)], 15: [('a',7),('c',3)]}
                fr = {1:'W', 9:'W'}
            for g in range(16):
                fill = [('e', g//2)] if g % 2 == 0 else list(v.get(g, []))
                gaps.append(dict(m=ms[g], fill=fill, free=fr.get(g), g=g))
                if g == 11 and ((j-1) % 5) in Z:
                    gaps.append(dict(m=('one',), fill=[], free='W', g=None))
            slots.append(gaps)
        seq = []
        for j, a, b, prev in [(1, 8, 99, False), (2,0,99,False), (3,0,99,False), (4,0,99,False), (0,0,99,True), (1,0,8,True)]:
            for gi, gp in enumerate(slots[j]):
                if gp['free'] and a <= (gp['g'] if gp['g'] is not None else 12) < b: seq.append((gp, prev, j))
        items = [('k', n) for n in range(8)] + [('v', n) for n in range(16)]
        Wpos = [i for i, x in enumerate(seq) if x[0]['free'] == 'W']
        dmapos = set([Wpos[0]] + Wpos[-7:])
        ii = 0
        for i, (gp, prev, j) in enumerate(seq):
            gp['prev'] = prev
            if i in dmapos: gp['dma'] = True
            else:
                n = 2 if gp['free'] == 'W' else 1
                gp['ds'] = items[ii:ii+n]; ii += n
        assert ii >= len(items), "DS items overflow"
        return slots

    def slot_gaps(self, s, j, drop=(), nomfma=(), first=False, pvorder=None, feed=True):
        u = 5*s + j
        out = []
        pvi = 0
        for gp in self.T[j]:
            m = gp['m']; mt = None
            if m[0] not in nomfma:
                if m[0] == 'qk':
                    t = (j+1) % 5; s1 = s + (1 if j == 4 else 0)
                    mt = self.qk(t, s1 % 2, (u+1) % 2, m[1])
                elif m[0] == 'pv':
                    t = (j-1) % 5; s0 = s - (1 if j == 0 else 0)
                    d = pvorder[m[1]] if pvorder else m[1]
                    mt = self.pv(t, s0 % 2, (u-1) % 2, d, first=(u-1 < 5))
                else:
                    mt = self.ones((j-1) % 5, (u-1) % 2, first=(u-1 < 5))
            fill = []
            w = s - (1 if gp.get('prev') else 0)
            for (k, n) in gp.get('ds', []):
                if k in drop or w + 1 > 15 or w < self.first_window: continue
                if k == 'k': fill.append((self.kread((w+1) % 2, (w+1) % 4, n), 'lg', ('Kf', w+1)))
                else: fill.append((self.vread((w+1) % 2, (w+1) % 4, n), 'lg', ('Vf', w+1)))
            for it in gp['fill']:
                k = it[0]
                if k == 'e': fill.append((self.ex(u % 2, it[1]), 'v', None))
                elif k == 'a': fill.append((self.add(j, u % 2, it[1], first=(u < 5)), 'v', None))
                elif k == 'c': fill.append((self.cvt(u % 2, u % 2, it[1]), 'v', None))
            g = dict(m=mt, sh=[], fill=fill, g=gp['g'], free=gp['free'], dma=bool(gp.get('dma')) and 'd' not in drop and feed, empty=(not fill))
            out.append(g)
        return out

    def feed_dma(self, gaps, hist):
        for gi, g in enumerate(gaps):
            if g['dma'] and self.dn < len(self.D):
                d = self.D[self.dn]; self.dn += 1
                allg = hist + gaps[:gi]
                if d['pre']:
                    p1 = allg[-1]; assert not p1.get('hasdma'), "DMA directly before group start"
                    assert not p1.get('done')
                    p1['sh'].append(d['pre'][-1])
                    if len(d['pre']) > 1:
                        p2 = allg[-2]
                        if p2.get('hasdma') or p2.get('done'): p1['sh'].insert(0, d['pre'][0])
                        else: p2['sh'].append(d['pre'][0])
                g['fill'] = [(d['t'], 'vm', d['tag'])]; g['hasdma'] = True
    def emit_gaps(self, gaps):
        e = self.e
        for g in gaps:
            g['done'] = True
            if g['m']: e(g['m'])
            elif g.get('nop', True): e("s_nop 0")
            for x in g['sh']:
                if callable(x): x()
                else: e(x)
            for (t, k, tag) in g['fill']:
                if k == 'lg': e.lg(t, tag)
                elif k == 'vm': e.vm(t, tag)
                else: e(t)
            for x in g.get('post', []):
                if callable(x): x()
                else: e(x)

    def q_prep(self, qt, extra_reads=None):
        e = self.e
        for ks in range(4):
            e.lg(f"ds_read_b128 {vr(Q+(qt*4+ks)*4,4)}, v{TMP+16+ks} offset:{qt*4096}", ('Qf', qt))
        if extra_reads: extra_reads()
        e.wait(lg=[('Qf', qt)])
        for r in range(0, 16, 4):
            b = Q + qt*16 + r
            for k in range(4):
                e(f"v_lshlrev_b32 v{TMP+2*k}, 16, v{b+k}\nv_and_b32 v{TMP+2*k+1}, s{sT+10}, v{b+k}")
            for k in range(4):
                e(f"v_pk_mul_f32 {vr(TMP+2*k,2)}, {vr(TMP+2*k,2)}, s[{sT+8}:{sT+9}]")
            for k in range(4):
                e(f"v_cvt_pk_bf16_f32 v{b+k}, v{TMP+2*k}, v{TMP+2*k+1}")

    def fast_path(self):
        e = self.e
        self.T = self.template()
        self.make_queue()
        self.first_window = 1
        pend = []
        if self.o.get('probe'):
            n = self.o['probe']
            e(f"v_mov_b32 v1, 0")
            for i in range(n):
                e(f"s_lshl_b32 s60, s2, 3\ns_and_b32 s60, s60, 0x7c0\ns_lshl_b32 s61, s{sW}, 8\ns_add_u32 s60, s60, s61\ns_add_u32 s60, s60, {131072 + i*4096}")
                e(f"buffer_load_dword v2, v1, s[{sV}:{sV+3}], s60 offen {self.o.get('probefl','')}\ns_waitcnt vmcnt(0)")
        self.issue_inline(14)
        self.stamp(8)
        self.addrs()
        for t in range(5): pass
        e.wait(vm=[('Q',0), ('K',0)]); e("s_barrier")
        self.stamp(1)
        self.issue_inline(6)
        def rk0():
            for n in range(8): e.lg(self.kread(0, 0, n), ('Kf', 0))
        self.q_prep(0, rk0)
        e.wait(lg=[('Kf', 0)])
        e("s_nop 0")
        for n in range(8): e(self.qk(0, 0, 0, n))
        plan = {0: (2, [('Q',1)]), 1: (6, [('Q',2), ('V',0)]), 2: (2, [('Q',3)]), 3: (2, [('Q',4)])}
        hist = []
        for j in range(4):
            n_iss, tags = plan[j]
            e.wait(vm=tags); e("s_barrier")
            self.issue_inline(n_iss)
            def rv0():
                for n in range(16): e.lg(self.vread(0, 0, n), ('Vf', 0))
            self.q_prep(j+1, rv0 if j == 1 else None)
            if j == 1: e.wait(lg=[('Vf', 0)])
            e("s_nop 1")
            gaps = self.slot_gaps(0, j, drop=('k','v') + (('d',) if j < 3 else ()), nomfma=('pv','one') if j == 0 else ())
            if j == 3:
                for g in gaps: g['dma'] = g['dma'] and g['g'] == 13
            self.feed_dma(gaps, [])
            self.emit_gaps(gaps)
        e.wait(vm=[('K',1)]); e("s_barrier")
        self.issue_inline(4)
        for n in range(8): e.lg(self.kread(1, 1, n), ('Kf', 1))
        e.wait(lg=[('Kf', 1)])
        gaps = self.slot_gaps(0, 4, drop=('k','v'))
        self.feed_dma(gaps, []); self.emit_gaps(gaps)
        e.wait(vm=[('V',1)]); e("s_barrier")
        self.issue_inline(4)
        for n in range(16): e.lg(self.vread(1, 1, n), ('Vf', 1))
        self.stamp(2); self.cstamp(0)
        def step(s, tail=False):
            gaps_all = []
            for j in range(5):
                kw = {}
                if s >= 14: kw['feed'] = False
                if s == 15 and j >= 1: kw['pvorder'] = [4,5,6,7,0,1,2,3]
                if s == 15 and j == 4: break
                gaps = self.slot_gaps(s, j, **kw)
                if j == 1:
                    g7 = gaps[7]
                    if s < 15:
                        g7['sh'].append(lambda s=s: (e.wait(vm=[('K', s+1), ('V', s+1)], lg='all'), e("s_barrier")))
                    else:
                        g7['sh'].append(lambda s=s: (e.wait(vm='all', lg='all'), e("s_barrier")))
                    if s == 1:
                        g7['sh'].append(lambda: self.issue_inline(3))
                if j == 3 and s < 15:
                    gaps[-1].setdefault('post', []).append(lambda s=s: e.wait(lg=[('Kf', s+1)]))
                if s == 15 and j in (2, 3):
                    ws = [g for g in gaps if g['free'] == 'W' and g['empty']][:4]
                    for x, g in enumerate(ws): g['fill'] = [(self.xwrite(j-2, x), 'lg', ('Xw', j-2))]
                gaps_all.append(gaps)
            flat = []
            for gaps in gaps_all:
                flat += gaps
            return flat
        def emit_step(s):
            flat = step(s)
            if s == 1:
                bi = [i for i, g in enumerate(flat) if g['sh']][0]
                self.feed_dma(flat[:bi+1], [])
                self.emit_gaps(flat[:bi+1])
                self.feed_dma(flat[bi+1:], flat[:bi+1][-2:])
                self.emit_gaps(flat[bi+1:])
            else:
                self.feed_dma(flat, self.lastgaps)
                self.emit_gaps(flat)
            self.lastgaps = []
        emit_step(1)
        assert self.dn == 55, self.dn
        for s in range(2, 14):
            if (s - 2) % 4 == 0: e.mark(f"it{(s-2)//4}")
            emit_step(s)
        e.mark("it3")
        emit_step(14)
        e(f"s_mul_i32 s{sT}, s{sW}, 20480\ns_xor_b32 s{sT+1}, s{sW}, 1\ns_mul_i32 s{sT+2}, s{sT+1}, 20480")
        e(f"v_lshlrev_b32 v2, 4, v{VLANE}\nv_add_u32 v3, s{sT+2}, v2\nv_add_u32 v2, s{sT}, v2")
        e(f"s_mul_i32 s{sT}, s{sW}, 1280\ns_mul_i32 s{sT+2}, s{sT+1}, 1280")
        e(f"v_lshlrev_b32 v4, 2, v{VLANE}\nv_add_u32 v4, {LXCH}, v4\nv_add_u32 v5, s{sT+2}, v4\nv_add_u32 v4, s{sT}, v4")
        emit_step(15)
        u = 79; order = [4,5,6,7,0,1,2,3]
        ms = [self.pv(3, 1, (u-1) % 2, d) for d in order]
        if 3 in self.Z: ms.insert(4, self.ones(3, (u-1) % 2))
        va = []
        for k in range(8):
            va.append([self.ex(u % 2, k)])
        seqv = []
        zt = 4 in self.Z
        for k in range(8):
            grp = [self.ex(u % 2, k)]
            if k >= 1 and not zt: grp.append(self.add(4, u % 2, k-1))
            if k >= 2 and k % 2 == 0: grp.append(self.cvt(u % 2, u % 2, k//2 - 1))
            seqv.append(grp)
        xw = [self.xwrite(2, x) for x in range(4)]
        e("s_nop 1")
        for i, m in enumerate(ms):
            e(m)
            if i in (1, 3, 5, 7): e.lg(xw[(i-1)//2], ('Xw', 2))
            if i < 8:
                for t in seqv[i]: e(t)
        e("s_nop 0")
        if not zt: e(self.add(4, u % 2, 7))
        e(self.cvt(u % 2, u % 2, 3))
        addt = [t for t in range(5) if t not in self.Z]
        lred = []
        for sw in ("v_permlane32_swap_b32", "v_permlane16_swap_b32"):
            lred += [f"v_mov_b32 v{TMP+8+i}, v{L+t}" for i, t in enumerate(addt)]
            lred += ["s_nop 0"] * max(0, 3 - len(addt))
            lred += [f"{sw} v{TMP+8+i}, v{L+t}" for i, t in enumerate(addt)]
            lred += ["s_nop 0"]
            lred += [f"v_add_f32 v{L+t}, v{L+t}, v{TMP+8+i}" for i, t in enumerate(addt)]
        e("s_nop 1")
        ms = [self.pv(4, 1, u % 2, d) for d in order]
        if 4 in self.Z: ms.insert(4, self.ones(4, u % 2))
        xw = [self.xwrite(3, x) for x in range(4)]
        li = 0
        for i, m in enumerate(ms):
            e(m)
            if i in (0, 2, 4, 6): e.lg(xw[i//2], ('Xw', 3))
            for _ in range(3):
                if li < len(lred) and i >= 1: e(lred[li]); li += 1
        while li < len(lred): e(lred[li]); li += 1
        e("s_nop 3")
        for x in range(4): e.lg(self.xwrite(4, x), ('Xw', 4))
        self.stamp(3); self.cstamp(1)
        e("s_nop 3")
        for t in range(5):
            if t in self.Z: e(f"v_accvgpr_read_b32 v{L+t}, a{LZ+4*t}")
        e("s_branch L_fin")

    def epi_slow(self):
        e = self.e
        e.label("L_epi_slow")
        e("s_nop 7\ns_nop 7")
        for t in range(5):
            if t not in self.Z:
                e(f"v_mov_b32 v1, v{L+t}\ns_nop 1\nv_permlane32_swap_b32 v1, v{L+t}\ns_nop 1\nv_add_f32 v{L+t}, v{L+t}, v1")
                e(f"v_mov_b32 v1, v{L+t}\ns_nop 1\nv_permlane16_swap_b32 v1, v{L+t}\ns_nop 1\nv_add_f32 v{L+t}, v{L+t}, v1")
            else:
                e(f"v_accvgpr_read_b32 v{L+t}, a{LZ+4*t}")
        e(f"s_mul_i32 s{sT}, s{sW}, 20480\ns_xor_b32 s{sT+1}, s{sW}, 1\ns_mul_i32 s{sT+2}, s{sT+1}, 20480")
        e(f"v_lshlrev_b32 v2, 4, v{VLANE}\nv_add_u32 v3, s{sT+2}, v2\nv_add_u32 v2, s{sT}, v2")
        e(f"s_mul_i32 s{sT}, s{sW}, 1280\ns_mul_i32 s{sT+2}, s{sT+1}, 1280")
        e(f"v_lshlrev_b32 v4, 2, v{VLANE}\nv_add_u32 v4, {LXCH}, v4\nv_add_u32 v5, s{sT+2}, v4\nv_add_u32 v4, s{sT}, v4")
        for t in range(5):
            for x in range(4): e(self.xwrite(t, x))
    def final(self):
        e = self.e
        e.label("L_fin")
        e.joined("final")
        for t in range(5): e(f"ds_write_b32 v4, v{L+t} offset:{t*256}")
        e(f"v_and_b32 v6, 15, v{VLANE}\nv_lshrrev_b32 v7, 4, v{VLANE}")
        e(f"s_mul_i32 s{sT}, s{sW}, 10240\ns_add_u32 s{sT}, s{sT}, {TRN}")
        e(f"v_lshlrev_b32 v1, 7, v6\nv_add_u32 v1, s{sT}, v1\nv_and_b32 v{TMP+20}, 1, v7\nv_lshl_add_u32 v1, v{TMP+20}, 3, v1")
        e(f"v_lshrrev_b32 v{TMP+20}, 1, v7\nv_and_b32 v{TMP+21}, 7, v6\nv_xor_b32 v{TMP+20}, v{TMP+20}, v{TMP+21}")
        for x in range(4):
            e(f"v_xor_b32 v{TMP+21}, {2*x}, v{TMP+20}\nv_lshl_add_u32 v{TMP+16+x}, v{TMP+21}, 4, v1")
        e(f"v_lshrrev_b32 v6, 3, v{VLANE}\nv_and_b32 v7, 7, v{VLANE}\nv_xor_b32 v1, v6, v7\nv_lshlrev_b32 v1, 4, v1\nv_lshl_add_u32 v1, v6, 7, v1\nv_add_u32 v{TMP+22}, s{sT}, v1")
        e(f"s_mul_i32 s{sT+1}, s{sRG}, {80*256}\ns_lshl_b32 s{sT+2}, s{sKH}, 7\ns_add_u32 s{sT+1}, s{sT+1}, s{sT+2}")
        e(f"v_lshlrev_b32 v7, 4, v7\nv_lshl_add_u32 v7, v6, 8, v7\nv_add_u32 v{TMP+23}, s{sT+1}, v7")
        e(f"s_mov_b32 s{sT+4}, {f32bits(self.lo):#x}\ns_mov_b32 s{sT+5}, {f32bits(self.hi):#x}")
        e("s_mov_b64 s[56:57], 0")
        e.wait(lg='all'); e("s_barrier")
        self.stamp(4)
        for t in range(5): e.lg(f"ds_read_b32 v{TMP+24+t}, v5 offset:{t*256}", ('l', 0))
        for t in range(5):
            for x in range(4):
                e.lg(f"ds_read_b128 {vr(Q+(t*4+x)*4,4)}, v3 offset:{XCH + (t*4+x)*1024}", ('Xr', t))
            if t == 1:
                e.wait(lg=[('l', 0)])
                for tt in range(5):
                    e(f"v_add_f32 v{L+tt}, v{L+tt}, v{TMP+24+tt}")
                for tt in range(5):
                    e(f"v_cmp_nle_f32 vcc, s{sT+4}, v{L+tt}\ns_or_b64 s[56:57], s[56:57], vcc")
                    e(f"v_cmp_nge_f32 vcc, s{sT+5}, v{L+tt}\ns_or_b64 s[56:57], s[56:57], vcc")
                    e(f"v_rcp_f32 v{TMP+2*tt}, v{L+tt}")
        RB = S
        def stores(t):
            e.wait(lg=[('Rb', t)])
            for h in range(2):
                e(f"s_mov_b32 s{sT+6+h}, {(t*2+h)*2048}")
            for h in range(2):
                e.vm(f"buffer_store_dwordx4 {vr(RB+(t%2)*8+4*h,4)}, v{TMP+23}, s[{sO}:{sO+3}], s{sT+6+h} offen {self.stflags}", ('St', t))
        for t in range(5):
            e.wait(lg=[('Xr', t)])
            rinv = vr(TMP+2*t, 2)
            for x in range(4):
                o = OK + (t*4+x)*4; r = Q + (t*4+x)*4
                e(f"v_pk_add_f32 {vr(o,2)}, {vr(o,2)}, {vr(r,2)}\nv_pk_add_f32 {vr(o+2,2)}, {vr(o+2,2)}, {vr(r+2,2)}")
            for x in range(4):
                o = OK + (t*4+x)*4
                e(f"v_pk_mul_f32 {vr(o,2)}, {vr(o,2)}, {rinv} op_sel_hi:[1,0]\nv_pk_mul_f32 {vr(o+2,2)}, {vr(o+2,2)}, {rinv} op_sel_hi:[1,0]")
            for x in range(4):
                o = OK + (t*4+x)*4
                e(f"v_cvt_pk_bf16_f32 v{o}, v{o}, v{o+1}\nv_cvt_pk_bf16_f32 v{o+1}, v{o+2}, v{o+3}")
                e.lg(f"ds_write_b64 v{TMP+16+x}, {vr(o,2)} offset:{t*2048}", ('Tw', t))
            if t >= 2: pass
            if t >= 1: stores(t-1)
            for h in range(2):
                e.lg(f"ds_read_b128 {vr(RB+(t%2)*8+4*h,4)}, v{TMP+22} offset:{(t*2+h)*1024}", ('Rb', t))
        stores(4)
        self.stamp(5)
        if self.dbg:
            e("s_waitcnt vmcnt(0)")
            self.stamp(6)
            e("s_waitcnt lgkmcnt(0)")
            self.dump_stamps(8)
        e(f"s_cmp_lg_u32 s{sPASS}, 0\ns_cbranch_scc1 L_end")
        e("s_cmp_lg_u64 s[56:57], 0\ns_cselect_b32 s58, 1, 0")
        e(f"s_lshl_b32 s59, s{sW}, 2\ns_add_u32 s59, s59, {FLG}\nv_mov_b32 v1, s59\nv_mov_b32 v2, s58\nds_write_b32 v1, v2")
        e(f"s_waitcnt lgkmcnt(0)\ns_barrier\nv_mov_b32 v1, {FLG}\nds_read_b128 v[4:7], v1\ns_waitcnt lgkmcnt(0)")
        e("v_or_b32 v4, v4, v5\nv_or_b32 v6, v6, v7\nv_or_b32 v4, v4, v6\ns_nop 1\nv_readfirstlane_b32 s58, v4\ns_nop 3\ns_cmp_eq_u32 s58, 0\ns_cbranch_scc1 L_end")
        e("s_waitcnt vmcnt(0)\ns_barrier")

    def slow_path(self):
        e = self.e
        CI = 232
        mx = [252, 253, 254, 255, 34]
        e.label("L_slow")
        e.joined("slow")
        e(f"s_mov_b32 s{sPASS}, 1")
        for qt in range(5):
            e(f"s_add_u32 s{sT+2}, s{sQ0}, {qt*4096}\ns_add_u32 m0, s{sT+2}, {QB}\ns_nop 0")
            e(self.dma_text(sQ, sT+2, 0)); e(self.dma_text(sQ, sT+2, 1))
        self.addrs()
        e("s_waitcnt vmcnt(0)\ns_barrier")
        for qt in range(5): self.q_prep(qt)
        for t in range(5): e(f"v_mov_b32 v{mx[t]}, 0xff800000")
        e(f"s_mov_b32 s{sSOFF}, s{sW4K}")
        e.label("L_smax")
        e(f"s_barrier\ns_add_u32 m0, s{sW4K}, {KRING}\ns_nop 0")
        for i4 in range(4): e(self.dma_text(sK, sSOFF, i4))
        e("s_waitcnt vmcnt(0)\ns_barrier")
        for n in range(8): e(self.kread(0, 0, n))
        e("s_waitcnt lgkmcnt(0)")
        for t in range(5):
            for n in range(8): e(self.qk(t, 0, 0, n))
            e("s_nop 7\ns_nop 1")
            for k in range(0, 8, 2): e(f"v_max3_f32 v{mx[t]}, v{mx[t]}, v{S+k}, v{S+k+1}")
            e("s_nop 3")
        e(f"s_add_u32 s{sSOFF}, s{sSOFF}, 16384\ns_cmp_lt_u32 s{sSOFF}, 262144\ns_cbranch_scc1 L_smax")
        for t in range(5):
            m = mx[t]
            e(f"v_mov_b32 v1, v{m}\ns_nop 1\nv_permlane32_swap_b32 v1, v{m}\ns_nop 1\nv_max_f32 v{m}, v{m}, v1")
            e(f"v_mov_b32 v1, v{m}\ns_nop 1\nv_permlane16_swap_b32 v1, v{m}\ns_nop 1\nv_max_f32 v{m}, v{m}, v1")
        e(f"s_xor_b32 s{sT+1}, s{sW}, 1\ns_mul_i32 s{sT}, s{sW}, 1280\ns_mul_i32 s{sT+2}, s{sT+1}, 1280")
        e(f"v_lshlrev_b32 v4, 2, v{VLANE}\nv_add_u32 v4, {LXCH}, v4\nv_add_u32 v5, s{sT+2}, v4\nv_add_u32 v4, s{sT}, v4")
        e("s_barrier")
        for t in range(5): e(f"ds_write_b32 v4, v{mx[t]} offset:{t*256}")
        e("s_waitcnt lgkmcnt(0)\ns_barrier")
        for t in range(5): e(f"ds_read_b32 v{S+t}, v5 offset:{t*256}")
        e("s_waitcnt lgkmcnt(0)")
        for t in range(5):
            e(f"v_max_f32 v{mx[t]}, v{mx[t]}, v{S+t}")
            for r in range(4): e(f"v_sub_f32 v{CI+4*t+r}, 0, v{mx[t]}")
        for r in range(80): e(f"v_mov_b32 v{OK+r}, 0")
        for r in range(80): e(f"v_accvgpr_write_b32 a{OS+r}, 0")
        for r in range(20): e(f"v_accvgpr_write_b32 a{LZ+r}, 0")
        for t in range(5): e(f"v_mov_b32 v{L+t}, 0")
        e(f"s_mov_b32 s{sSOFF}, s{sW4K}")
        e.label("L_smain")
        e(f"s_barrier\ns_add_u32 m0, s{sW4K}, {KRING}\ns_nop 0")
        for i4 in range(4): e(self.dma_text(sK, sSOFF, i4))
        e(f"s_add_u32 m0, s{sW4K}, {VRING}\ns_nop 0")
        for i4 in range(4): e(self.dma_text(sV, sSOFF, i4))
        e("s_waitcnt vmcnt(0)\ns_barrier")
        for n in range(8): e(self.kread(0, 0, n))
        e("s_waitcnt lgkmcnt(0)")
        for n in range(16): e(self.vread(0, 0, n))
        e("s_waitcnt lgkmcnt(0)")
        for t in range(5):
            for n in range(8): e(self.qk(t, 0, 0, n, cinit=vr(CI+4*t, 4)))
            e("s_nop 7\ns_nop 1")
            for k in range(8): e(self.ex(0, k))
            e("s_nop 0")
            if t not in self.Z:
                for k in range(8): e(self.add(t, 0, k))
            for m in range(4): e(self.cvt(0, 0, m))
            e("s_nop 1")
            for d in range(8): e(self.pv(t, 0, 0, d))
            if t in self.Z: e(self.ones(t, 0))
            e("s_nop 3")
        e(f"s_add_u32 s{sSOFF}, s{sSOFF}, 16384\ns_cmp_lt_u32 s{sSOFF}, 262144\ns_cbranch_scc1 L_smain")
        e("s_barrier")

    def build(self, unroll=False):
        e = self.e
        self.setup()
        if self.fast: self.fast_path()
        else: e("s_branch L_slow")
        e.mark("epi")
        e("s_branch L_fin")
        self.slow_path()
        self.epi_slow()
        self.final()
        e("s_branch L_slow")
        e.label("L_end")
        e("s_endpgm")
        e.resolve()
        if self.fast:
            pre = e.texts(None, "it0"); its = [e.texts(f"it{k}", f"it{k+1}") for k in range(3)]
            post = e.texts("it3", None)
            assert its[0] == its[1] == its[2], "loop iterations differ"
            if unroll: body = pre + its[0] + its[1] + its[2] + post
            else:
                body = pre + [".p2align 6", "L_top:"] + its[0] + [f"s_cmp_lt_u32 s{sSOFF}, {17*16384}", "s_cbranch_scc1 L_top"] + post
        else: body = e.texts()
        txt = "\n".join(l if (l.endswith(":") or l.startswith(";") or l.startswith(".")) else "    " + l for l in body)
        hdr = HEADER + "; @launch grid=(256,1,1) block=(256,1,1) lds=163840\n"
        hdr += f""".amdgcn_target "amdgcn-amd-amdhsa--gfx950"
.text
.globl {KNAME}
.p2align 8
.type {KNAME},@function
{KNAME}:
"""
        ftr = f"""
.section .rodata,"a"
.p2align 6
.amdhsa_kernel {KNAME}
  .amdhsa_next_free_vgpr 512
  .amdhsa_next_free_sgpr 102
  .amdhsa_accum_offset 256
  .amdhsa_group_segment_fixed_size 0
  .amdhsa_kernarg_size 48
  .amdhsa_user_sgpr_count 2
  .amdhsa_user_sgpr_kernarg_segment_ptr 1
  .amdhsa_system_sgpr_workgroup_id_x 1
.end_amdhsa_kernel
"""
        return hdr + txt + "\n" + ftr

if __name__ == "__main__":
    ap = argparse.ArgumentParser()
    ap.add_argument("--slow", action="store_true")
    ap.add_argument("--Z", default="2,3")
    ap.add_argument("--lo", type=float, default=2.0**-6)
    ap.add_argument("--hi", type=float, default=2.0**100)
    ap.add_argument("--dbg", type=int, default=0)
    ap.add_argument("--st", default="sc1")
    ap.add_argument("--unroll", action="store_true")
    ap.add_argument("--probe", type=int, default=0)
    ap.add_argument("--probefl", default="")
    ap.add_argument("--ldq", default="")
    ap.add_argument("--ldkv", default="")
    ap.add_argument("-o", default="out.s")
    a = ap.parse_args()
    Z = tuple(int(x) for x in a.Z.split(",") if x != "")
    g = Gen(Z=Z, fast=not a.slow, lo=a.lo, hi=a.hi, dbg=a.dbg, st=a.st.replace("+", " "), opts=dict(ldq=a.ldq, ldkv=a.ldkv, probe=a.probe, probefl=a.probefl))
    open(a.o, "w").write(g.build(unroll=a.unroll))
```

```python
import sys, argparse
from common import *

sQ, sK, sV, sO = 4, 8, 12, 16
sW, sRG, sKH, sW4K, sSOFF, sPASS = 20, 21, 22, 23, 24, 26
sQ0 = 27
sT = 48
KADDR, VADDR, DVO, ONES, L, VLANE = 8, 12, 20, 24, 28, 33
S, P, Q, OK = 36, 52, 64, 144
TMP = 224
XW, XR, LW, LR = 34, 35, 60, 61
TW, TR, STO = 244, 248, 249
OS, KF, VF, LZ = 0, 80, 144, 208
KRING, VRING, QB = 0, 65536, 122880
XCH, LXCH, TRN, FLG = 0, 81920, 98304, 147456
M16 = "v_mfma_f32_16x16x32_bf16"

def oacc(qt, dtp):
    if dtp < 4: return vr(OK + (qt*4+dtp)*4, 4)
    return ar(OS + (qt*4+dtp-4)*4, 4)

class Stream:
    def __init__(self): self.it = []
    def __call__(self, text):
        for l in text.split("\n"):
            l = l.strip()
            if l: self.it.append(dict(t=l))
    def c(self, s): self.it.append(dict(t="; " + s))
    def label(self, s): self.it.append(dict(t=s + ":"))
    def vm(self, text, tag): self.it.append(dict(t=text, vm=tag))
    def lg(self, text, tag): self.it.append(dict(t=text, lg=tag))
    def wait(self, vm=None, lg=None): self.it.append(dict(wait=True, wvm=vm, wlg=lg))
    def mark(self, name): self.it.append(dict(mark=name))
    def joined(self, name): self.it.append(dict(reset=True, t="; " + name))
    def resolve(self):
        vm = []; lg = []
        for x in self.it:
            if x.get('reset'): vm = []; lg = []
            if 'vm' in x: vm.append(x['vm'])
            if 'lg' in x: lg.append(x['lg'])
            if x.get('wait'):
                parts = []
                for name, want, hist, mx in (("vmcnt", x['wvm'], vm, 63), ("lgkmcnt", x['wlg'], lg, 15)):
                    if want is None: continue
                    if want == 'all': n = 0
                    else:
                        idx = [i for i, tg in enumerate(hist) if tg in want]
                        missing = [w for w in want if w not in hist]
                        assert not missing, f"wait on unissued {missing}"
                        n = len(hist) - 1 - max(idx)
                    parts.append(f"{name}({min(n, mx)})")
                x['t'] = "s_waitcnt " + " ".join(parts)
    def texts(self, a=None, b=None):
        on = a is None; out = []
        for x in self.it:
            if 'mark' in x:
                if x['mark'] == a: on = True
                elif x['mark'] == b: break
                continue
            if on: out.append(x['t'])
        return out

class Gen:
    def __init__(self, Z=(2,3), fast=True, dbg=0, lo=2.0**-6, hi=2.0**100, st="sc1", opts=None):
        self.e = Stream(); self.Z = set(Z); self.fast = fast; self.dbg = dbg; self.lo = lo; self.hi = hi
        self.stflags = st; self.o = opts or {}
    def stamp(self, k):
        if self.dbg: self.e(f"s_memrealtime s[{64+2*k}:{65+2*k}]")
    def cstamp(self, k):
        if self.dbg == 2: self.e(f"s_memtime s[{84+2*k}:{85+2*k}]")
    def dump_stamps(self, n):
        if not self.dbg: return
        e = self.e
        if self.dbg == 2:
            e("s_load_dwordx2 s[90:91], s[0:1], 40\ns_waitcnt lgkmcnt(0)")
            e("s_mov_b32 s92, s90\ns_and_b32 s93, s91, 0xffff\ns_mov_b32 s94, 0x100000\ns_mov_b32 s95, 0x20000")
            e(f"s_lshl_b32 s98, s2, 2\ns_add_u32 s98, s98, s{sW}\ns_lshl_b32 s98, s98, 6")
            e(f"v_cmp_eq_u32 vcc, 0, v{VLANE}\ns_and_saveexec_b64 s[96:97], vcc\ns_cbranch_execz L_nodump")
            e("v_mov_b32 v3, s98")
            for k in range(10):
                e(f"v_mov_b32 v1, s{64+2*k}\nbuffer_store_dword v1, v3, s[92:95], 0 offen offset:{4*k}")
            for k in range(2):
                e(f"v_mov_b32 v1, s{84+2*k}\nbuffer_store_dword v1, v3, s[92:95], 0 offen offset:{40+4*k}")
            e("s_waitcnt vmcnt(0)")
            e.label("L_nodump")
            e("s_mov_b64 exec, s[96:97]")
            return
        e("s_load_dwordx2 s[90:91], s[0:1], 32\ns_waitcnt lgkmcnt(0)")
        e("s_mov_b32 s92, s90\ns_and_b32 s93, s91, 0xffff\ns_mov_b32 s94, 256\ns_mov_b32 s95, 0x20000")
        e(f"v_cmp_eq_u32 vcc, 0, v{VLANE}\ns_and_saveexec_b64 s[96:97], vcc\ns_cbranch_execz L_nodump")
        for k in range(n):
            e(f"v_mov_b32 v1, s{64+2*k}\nv_not_b32 v2, v1\nv_mov_b32 v3, {8*k}")
            e(f"buffer_atomic_umax v1, v3, s[92:95], 0 offen\nbuffer_atomic_umax v2, v3, s[92:95], 0 offen offset:4\ns_waitcnt vmcnt(0)")
        e.label("L_nodump")
        e("s_mov_b64 exec, s[96:97]")

    def setup(self):
        e = self.e
        e("s_cmp_ge_u32 s2, 256\ns_cbranch_scc1 L_end")
        self.stamp(0)
        e("s_load_dwordx4 s[40:43], s[0:1], 0\ns_load_dwordx4 s[44:47], s[0:1], 16")
        e(f"v_lshrrev_b32 v1, 6, v0\nv_and_b32 v{VLANE}, 63, v0")
        e("s_and_b32 s48, s2, 7\ns_lshr_b32 s49, s2, 3")
        e(f"v_readfirstlane_b32 s{sW}, v1")
        e("s_lshl_b32 s50, s48, 5\ns_add_u32 s50, s50, s49\ns_mul_i32 s50, s50, 40960")
        e("s_lshl_b32 s51, s48, 3\ns_lshr_b32 s52, s49, 2\ns_add_u32 s51, s51, s52\ns_lshl_b32 s51, s51, 18")
        e(f"v_and_b32 v2, 15, v{VLANE}\nv_lshrrev_b32 v3, 4, v{VLANE}")
        for ee in range(2):
            e(f"v_add_u32 v4, {4*ee}, v3\nv_lshlrev_b32 v4, 1, v4\nv_xor_b32 v4, v2, v4\nv_lshlrev_b32 v4, 4, v4")
            e(f"v_lshl_add_u32 v{DVO+ee}, v3, 8, v4")
        e(f"s_lshr_b32 s{sRG}, s{sW}, 1\ns_and_b32 s{sKH}, s{sW}, 1\ns_lshl_b32 s{sW4K}, s{sW}, 12")
        e(f"s_mul_i32 s{sQ0}, s{sRG}, {80*256}\ns_lshl_b32 s53, s{sKH}, 11\ns_add_u32 s{sQ0}, s{sQ0}, s53")
        e(f"s_mov_b32 s{sPASS}, 0")
        for srd, n in ((sQ, 40960), (sK, 262144), (sV, 262144), (sO, 40960)):
            e(f"s_mov_b32 s{srd+2}, {n}\ns_mov_b32 s{srd+3}, 0x20000")
        e("s_waitcnt lgkmcnt(0)")
        self.stamp(7)
        for srd, ptr, off in ((sQ, 40, 50), (sK, 42, 51), (sV, 44, 51), (sO, 46, 50)):
            e(f"s_add_u32 s{srd}, s{ptr}, s{off}\ns_addc_u32 s{srd+1}, s{ptr+1}, 0\ns_and_b32 s{srd+1}, s{srd+1}, 0xffff")
    def addrs(self):
        e = self.e
        e(f"v_and_b32 v2, 15, v{VLANE}\nv_lshrrev_b32 v3, 4, v{VLANE}")
        e(f"s_lshl_b32 s{sT}, s{sKH}, 5")
        e("v_and_b32 v4, 7, v2\nv_lshlrev_b32 v4, 1, v4")
        e(f"v_add_u32 v5, s{sT}, v2\nv_lshlrev_b32 v5, 8, v5")
        for ks in range(4):
            e(f"v_add_u32 v6, {4*ks}, v3\nv_xor_b32 v6, v6, v4\nv_lshl_add_u32 v{KADDR+ks}, v6, 4, v5")
        e("v_lshrrev_b32 v4, 2, v2")
        e("v_and_b32 v5, 1, v3\nv_lshl_add_u32 v5, v5, 2, v4")
        e(f"s_lshl_b32 s{sT+1}, s{sKH}, 2\nv_xor_b32 v5, s{sT+1}, v5")
        e(f"v_lshl_add_u32 v6, v3, 2, v4\nv_add_u32 v6, s{sT}, v6\nv_lshlrev_b32 v6, 8, v6")
        e(f"v_and_b32 v7, 3, v2\nv_lshl_add_u32 v6, v7, 3, v6\nv_add_u32 v6, {VRING}, v6")
        for d in range(8):
            e(f"v_xor_b32 v7, {d}, v5\nv_lshl_add_u32 v{VADDR+d}, v7, 5, v6")
        for r in range(4): e(f"v_mov_b32 v{ONES+r}, 0x3f803f80")
        e(f"s_mul_i32 s{sT}, s{sRG}, {80*256}\ns_lshl_b32 s{sT+1}, s{sKH}, 13\ns_sub_u32 s{sT}, s{sT}, s{sT+1}\ns_add_u32 s{sT}, s{sT}, {QB}")
        for ks in range(4): e(f"v_add_u32 v{TMP+16+ks}, s{sT}, v{KADDR+ks}")
        e(f"s_mov_b32 s{sT+8}, {C_SCALE:#x}\ns_mov_b32 s{sT+9}, {C_SCALE:#x}\ns_mov_b32 s{sT+10}, 0xffff0000")
    def epi_addrs(self):
        e = self.e
        e(f"s_mul_i32 s{sT}, s{sW}, 20480\ns_xor_b32 s{sT+1}, s{sW}, 1\ns_mul_i32 s{sT+2}, s{sT+1}, 20480")
        e(f"v_lshlrev_b32 v2, 4, v{VLANE}\nv_add_u32 v{XR}, s{sT+2}, v2\nv_add_u32 v{XW}, s{sT}, v2")
        e(f"s_mul_i32 s{sT}, s{sW}, 1280\ns_mul_i32 s{sT+2}, s{sT+1}, 1280")
        e(f"v_lshlrev_b32 v4, 2, v{VLANE}\nv_add_u32 v4, {LXCH}, v4\nv_add_u32 v{LR}, s{sT+2}, v4\nv_add_u32 v{LW}, s{sT}, v4")
        e(f"v_and_b32 v6, 15, v{VLANE}\nv_lshrrev_b32 v7, 4, v{VLANE}")
        e(f"s_mul_i32 s{sT}, s{sW}, 10240\ns_add_u32 s{sT}, s{sT}, {TRN}")
        e(f"v_lshlrev_b32 v1, 7, v6\nv_add_u32 v1, s{sT}, v1\nv_lshrrev_b32 v2, 3, v6\nv_xor_b32 v2, v2, v7\nv_and_b32 v2, 1, v2\nv_lshl_add_u32 v1, v2, 3, v1")
        e(f"v_lshrrev_b32 v2, 1, v7\nv_and_b32 v3, 7, v6\nv_xor_b32 v2, v2, v3")
        for x in range(4):
            e(f"v_xor_b32 v3, {2*x}, v2\nv_lshl_add_u32 v{TW+x}, v3, 4, v1")
        e(f"v_lshrrev_b32 v6, 3, v{VLANE}\nv_and_b32 v7, 7, v{VLANE}\nv_xor_b32 v1, v6, v7\nv_lshlrev_b32 v1, 4, v1\nv_lshl_add_u32 v1, v6, 7, v1\nv_add_u32 v{TR}, s{sT}, v1")
        e(f"s_mul_i32 s{sT+1}, s{sRG}, {80*256}\ns_lshl_b32 s{sT+2}, s{sKH}, 7\ns_add_u32 s{sT+1}, s{sT+1}, s{sT+2}")
        e(f"v_lshlrev_b32 v7, 4, v7\nv_lshl_add_u32 v7, v6, 8, v7\nv_add_u32 v{STO}, s{sT+1}, v7")

    def dma_text(self, srd, soff, i4):
        fl = self.o.get('ldq', '') if srd == sQ else self.o.get('ldkv', '')
        return f"buffer_load_dwordx4 v{DVO + (i4 & 1)}, s[{srd}:{srd+3}], s{soff} offen offset:{1024*i4} {fl} lds"
    def make_queue(self):
        D = []
        def q(qt):
            pre = [f"s_add_u32 s{sT+2}, s{sQ0}, {qt*4096}", f"s_add_u32 m0, s{sT+2}, {QB}"]
            for i in range(2): D.append(dict(t=self.dma_text(sQ, sT+2, i), tag=('Q', qt), pre=pre if i == 0 else []))
        def kv(w, st):
            base = (KRING if w == 'K' else VRING) + (st % 4)*16384
            pre = []
            if w == 'K': pre.append(f"s_add_u32 s{sSOFF}, s{sW4K}, 0" if st == 0 else f"s_add_u32 s{sSOFF}, s{sSOFF}, 16384")
            pre.append(f"s_add_u32 m0, s{sW4K}, {base}")
            for i in range(4): D.append(dict(t=self.dma_text(sK if w == 'K' else sV, sSOFF, i), tag=(w, st), pre=pre if i == 0 else []))
        q(0); kv('K', 0); q(1); kv('V', 0); q(2); q(3); q(4)
        for st in range(1, 18):
            kv('K', st); kv('V', st)
        self.D = D; self.dn = 0
    def issue_inline(self, n):
        e = self.e
        for _ in range(n):
            d = self.D[self.dn]; self.dn += 1
            if d['pre']:
                for p in d['pre']: e(p)
                e("s_nop 0")
            e.vm(d['t'], d['tag'])

    def kread(self, buf, slot, n):
        kt, ks = n // 4, n % 4
        return f"ds_read_b128 {ar(KF+buf*32+n*4,4)}, v{KADDR+ks} offset:{slot*16384 + kt*4096}"
    def vread(self, buf, slot, n):
        d, h2 = n // 2, n % 2
        return f"ds_read_b64_tr_b16 {ar(VF+buf*32+d*4+2*h2,2)}, v{VADDR+d} offset:{slot*16384 + h2*4096}"
    def qk(self, tile, kbuf, sb, n, cinit=None):
        kt, ks = n // 4, n % 4
        d = vr(S + sb*8 + kt*4, 4)
        c = d if ks else (cinit if cinit else "0")
        return f"{M16} {d}, {ar(KF+kbuf*32+n*4,4)}, {vr(Q+(tile*4+ks)*4,4)}, {c}"
    def pv(self, tile, vbuf, pb, dtp, first=False):
        o = oacc(tile, dtp)
        return f"{M16} {o}, {ar(VF+vbuf*32+dtp*4,4)}, {vr(P+pb*4,4)}, {'0' if first else o}"
    def ones(self, tile, pb, first=False):
        o = ar(LZ+tile*4, 4)
        return f"{M16} {o}, {vr(ONES,4)}, {vr(P+pb*4,4)}, {'0' if first else o}"
    def ex(self, sb, k): return f"v_exp_f32 v{S+sb*8+k}, v{S+sb*8+k}"
    def add(self, tile, sb, k, first=False):
        if first and k == 0: return f"v_mov_b32 v{L+tile}, v{S+sb*8+k}"
        return f"v_add_f32 v{L+tile}, v{L+tile}, v{S+sb*8+k}"
    def cvt(self, sb, pb, m): return f"v_cvt_pk_bf16_f32 v{P+pb*4+m}, v{S+sb*8+2*m}, v{S+sb*8+2*m+1}"
    def xwrite(self, t, x): return f"ds_write_b128 v{XW}, {ar(OS+(t*4+x)*4,4)} offset:{XCH + (t*4+x)*1024}"

    def template(self):
        Z = self.Z
        slots = []
        for j in range(5):
            gaps = []
            ms = [('qk', n) for n in range(8)] + [('pv', d) for d in range(8)]
            if j in Z:
                v = {3: [('c',0)], 7: [('c',1)], 11: [('c',2)], 15: [('c',3)]}
                fr = {1:'W',3:'s',5:'W',7:'s',9:'W',11:'s',13:'W',15:'s'}
            else:
                v = {3: [('a',0),('a',1)], 5: [('c',0),('a',2)], 7: [('a',3),('c',1)], 11: [('a',4),('a',5)], 13: [('c',2),('a',6)], 15: [('a',7),('c',3)]}
                fr = {1:'W', 9:'W'}
            for g in range(16):
                fill = [('e', g//2)] if g % 2 == 0 else list(v.get(g, []))
                gaps.append(dict(m=ms[g], fill=fill, free=fr.get(g), g=g))
                if g == 11 and ((j-1) % 5) in Z:
                    gaps.append(dict(m=('one',), fill=[], free='W', g=None))
            slots.append(gaps)
        seq = []
        for j, a, b, prev in [(1, 8, 99, False), (2,0,99,False), (3,0,99,False), (4,0,99,False), (0,0,99,True), (1,0,8,True)]:
            for gi, gp in enumerate(slots[j]):
                if gp['free'] and a <= (gp['g'] if gp['g'] is not None else 12) < b: seq.append((gp, prev, j))
        items = [('k', n) for n in range(8)] + [('v', n) for n in range(16)]
        Wpos = [i for i, x in enumerate(seq) if x[0]['free'] == 'W']
        dmapos = set([Wpos[0]] + Wpos[-7:])
        ii = 0
        for i, (gp, prev, j) in enumerate(seq):
            gp['prev'] = prev
            if i in dmapos: gp['dma'] = True
            else:
                n = 2 if gp['free'] == 'W' else 1
                gp['ds'] = items[ii:ii+n]; ii += n
        assert ii >= len(items), "DS items overflow"
        return slots

    def slot_gaps(self, s, j, drop=(), nomfma=(), first=False, pvorder=None, feed=True):
        u = 5*s + j
        out = []
        pvi = 0
        for gp in self.T[j]:
            m = gp['m']; mt = None
            if m[0] not in nomfma:
                if m[0] == 'qk':
                    t = (j+1) % 5; s1 = s + (1 if j == 4 else 0)
                    mt = self.qk(t, s1 % 2, (u+1) % 2, m[1])
                elif m[0] == 'pv':
                    t = (j-1) % 5; s0 = s - (1 if j == 0 else 0)
                    d = pvorder[m[1]] if pvorder else m[1]
                    mt = self.pv(t, s0 % 2, (u-1) % 2, d, first=(u-1 < 5))
                else:
                    mt = self.ones((j-1) % 5, (u-1) % 2, first=(u-1 < 5))
            fill = []
            w = s - (1 if gp.get('prev') else 0)
            for (k, n) in gp.get('ds', []):
                if k in drop or w + 1 > 15 or w < self.first_window: continue
                if k == 'k': fill.append((self.kread((w+1) % 2, (w+1) % 4, n), 'lg', ('Kf', w+1)))
                else: fill.append((self.vread((w+1) % 2, (w+1) % 4, n), 'lg', ('Vf', w+1)))
            for it in gp['fill']:
                k = it[0]
                if k == 'e': fill.append((self.ex(u % 2, it[1]), 'v', None))
                elif k == 'a': fill.append((self.add(j, u % 2, it[1], first=(u < 5)), 'v', None))
                elif k == 'c': fill.append((self.cvt(u % 2, u % 2, it[1]), 'v', None))
            g = dict(m=mt, sh=[], fill=fill, g=gp['g'], free=gp['free'], dma=bool(gp.get('dma')) and 'd' not in drop and feed, empty=(not fill))
            out.append(g)
        return out

    def feed_dma(self, gaps, hist):
        for gi, g in enumerate(gaps):
            if g['dma'] and self.dn < len(self.D):
                d = self.D[self.dn]; self.dn += 1
                allg = hist + gaps[:gi]
                if d['pre']:
                    p1 = allg[-1]; assert not p1.get('hasdma'), "DMA directly before group start"
                    assert not p1.get('done')
                    p1['sh'].append(d['pre'][-1])
                    if len(d['pre']) > 1:
                        p2 = allg[-2]
                        if p2.get('hasdma') or p2.get('done'): p1['sh'].insert(0, d['pre'][0])
                        else: p2['sh'].append(d['pre'][0])
                g['fill'] = [(d['t'], 'vm', d['tag'])]; g['hasdma'] = True
    def emit_gaps(self, gaps):
        e = self.e
        for g in gaps:
            g['done'] = True
            if g['m']: e(g['m'])
            elif g.get('nop', True): e("s_nop 0")
            for x in g['sh']:
                if callable(x): x()
                else: e(x)
            for (t, k, tag) in g['fill']:
                if k == 'lg': e.lg(t, tag)
                elif k == 'vm': e.vm(t, tag)
                else: e(t)
            for x in g.get('post', []):
                if callable(x): x()
                else: e(x)

    def q_prep(self, qt, extra_reads=None):
        e = self.e
        for ks in range(4):
            e.lg(f"ds_read_b128 {vr(Q+(qt*4+ks)*4,4)}, v{TMP+16+ks} offset:{qt*4096}", ('Qf', qt))
        if extra_reads: extra_reads()
        e.wait(lg=[('Qf', qt)])
        for r in range(0, 16, 4):
            b = Q + qt*16 + r
            for k in range(4):
                e(f"v_lshlrev_b32 v{TMP+2*k}, 16, v{b+k}\nv_and_b32 v{TMP+2*k+1}, s{sT+10}, v{b+k}")
            for k in range(4):
                e(f"v_pk_mul_f32 {vr(TMP+2*k,2)}, {vr(TMP+2*k,2)}, s[{sT+8}:{sT+9}]")
            for k in range(4):
                e(f"v_cvt_pk_bf16_f32 v{b+k}, v{TMP+2*k}, v{TMP+2*k+1}")

    def fast_path(self):
        e = self.e
        self.T = self.template()
        self.make_queue()
        self.first_window = 1
        pend = []
        if self.o.get('probe'):
            n = self.o['probe']
            e(f"v_mov_b32 v1, 0")
            for i in range(n):
                e(f"s_lshl_b32 s60, s2, 3\ns_and_b32 s60, s60, 0x7c0\ns_lshl_b32 s61, s{sW}, 8\ns_add_u32 s60, s60, s61\ns_add_u32 s60, s60, {131072 + i*4096}")
                e(f"buffer_load_dword v2, v1, s[{sV}:{sV+3}], s60 offen {self.o.get('probefl','')}\ns_waitcnt vmcnt(0)")
        self.issue_inline(14)
        self.stamp(8)
        self.addrs()
        self.epi_addrs()
        e.wait(vm=[('Q',0), ('K',0)]); e("s_barrier")
        self.stamp(1)
        self.issue_inline(6)
        def rk0():
            for n in range(8): e.lg(self.kread(0, 0, n), ('Kf', 0))
        self.q_prep(0, rk0)
        e.wait(lg=[('Kf', 0)])
        e("s_nop 0")
        for n in range(8): e(self.qk(0, 0, 0, n))
        plan = {0: (2, [('Q',1)]), 1: (6, [('Q',2), ('V',0)]), 2: (2, [('Q',3)]), 3: (2, [('Q',4)])}
        hist = []
        for j in range(4):
            n_iss, tags = plan[j]
            e.wait(vm=tags); e("s_barrier")
            self.issue_inline(n_iss)
            def rv0():
                for n in range(16): e.lg(self.vread(0, 0, n), ('Vf', 0))
            self.q_prep(j+1, rv0 if j == 1 else None)
            if j == 1: e.wait(lg=[('Vf', 0)])
            e("s_nop 1")
            gaps = self.slot_gaps(0, j, drop=('k','v') + (('d',) if j < 3 else ()), nomfma=('pv','one') if j == 0 else ())
            if j == 3:
                for g in gaps: g['dma'] = g['dma'] and g['g'] == 13
            self.feed_dma(gaps, [])
            self.emit_gaps(gaps)
        e.wait(vm=[('K',1)]); e("s_barrier")
        self.issue_inline(4)
        for n in range(8): e.lg(self.kread(1, 1, n), ('Kf', 1))
        e.wait(lg=[('Kf', 1)])
        gaps = self.slot_gaps(0, 4, drop=('k','v'))
        self.feed_dma(gaps, []); self.emit_gaps(gaps)
        e.wait(vm=[('V',1)]); e("s_barrier")
        self.issue_inline(4)
        for n in range(16): e.lg(self.vread(1, 1, n), ('Vf', 1))
        self.stamp(2); self.cstamp(0)
        def step(s, tail=False):
            gaps_all = []
            for j in range(5):
                kw = {}
                if s >= 14: kw['feed'] = False
                if s == 15 and j >= 1: kw['pvorder'] = [4,5,6,7,0,1,2,3]
                if s == 15 and j == 4: break
                gaps = self.slot_gaps(s, j, **kw)
                if j == 1:
                    g7 = gaps[7]
                    if s < 15:
                        g7['sh'].append(lambda s=s: (e.wait(vm=[('K', s+1), ('V', s+1)], lg='all'), e("s_barrier")))
                    else:
                        g7['sh'].append(lambda s=s: (e.wait(vm='all', lg='all'), e("s_barrier")))
                    if s == 1:
                        g7['sh'].append(lambda: self.issue_inline(3))
                if j == 3 and s < 15:
                    gaps[-1].setdefault('post', []).append(lambda s=s: e.wait(lg=[('Kf', s+1)]))
                if s == 15 and j in (2, 3):
                    ws = [g for g in gaps if g['free'] == 'W' and g['empty']][:4]
                    for x, g in enumerate(ws): g['fill'] = [(self.xwrite(j-2, x), 'lg', ('Xw', j-2))]
                gaps_all.append(gaps)
            flat = []
            for gaps in gaps_all:
                flat += gaps
            return flat
        def emit_step(s):
            flat = step(s)
            if s == 1:
                bi = [i for i, g in enumerate(flat) if g['sh']][0]
                self.feed_dma(flat[:bi+1], [])
                self.emit_gaps(flat[:bi+1])
                self.feed_dma(flat[bi+1:], flat[:bi+1][-2:])
                self.emit_gaps(flat[bi+1:])
            else:
                self.feed_dma(flat, self.lastgaps)
                self.emit_gaps(flat)
            self.lastgaps = []
        emit_step(1)
        assert self.dn == 55, self.dn
        for s in range(2, 14):
            if (s - 2) % 4 == 0: e.mark(f"it{(s-2)//4}")
            emit_step(s)
        e.mark("it3")
        emit_step(14)
        emit_step(15)
        u = 79; order = [4,5,6,7,0,1,2,3]
        ms = [self.pv(3, 1, (u-1) % 2, d) for d in order]
        if 3 in self.Z: ms.insert(4, self.ones(3, (u-1) % 2))
        va = []
        for k in range(8):
            va.append([self.ex(u % 2, k)])
        seqv = []
        zt = 4 in self.Z
        for k in range(8):
            grp = [self.ex(u % 2, k)]
            if k >= 1 and not zt: grp.append(self.add(4, u % 2, k-1))
            if k >= 2 and k % 2 == 0: grp.append(self.cvt(u % 2, u % 2, k//2 - 1))
            seqv.append(grp)
        xw = [self.xwrite(2, x) for x in range(4)]
        e("s_nop 1")
        for i, m in enumerate(ms):
            e(m)
            if i in (1, 3, 5, 7): e.lg(xw[(i-1)//2], ('Xw', 2))
            if i < 8:
                for t in seqv[i]: e(t)
        e("s_nop 0")
        if not zt: e(self.add(4, u % 2, 7))
        e(self.cvt(u % 2, u % 2, 3))
        addt = [t for t in range(5) if t not in self.Z]
        lred = []
        for sw in ("v_permlane32_swap_b32", "v_permlane16_swap_b32"):
            lred += [f"v_mov_b32 v{TMP+8+i}, v{L+t}" for i, t in enumerate(addt)]
            lred += ["s_nop 0"] * max(0, 3 - len(addt))
            lred += [f"{sw} v{TMP+8+i}, v{L+t}" for i, t in enumerate(addt)]
            lred += ["s_nop 0"]
            lred += [f"v_add_f32 v{L+t}, v{L+t}, v{TMP+8+i}" for i, t in enumerate(addt)]
        e("s_nop 1")
        ms = [self.pv(4, 1, u % 2, d) for d in order]
        if 4 in self.Z: ms.insert(4, self.ones(4, u % 2))
        xw = [self.xwrite(3, x) for x in range(4)]
        li = 0
        for i, m in enumerate(ms):
            e(m)
            if i in (0, 2, 4, 6): e.lg(xw[i//2], ('Xw', 3))
            for _ in range(3):
                if li < len(lred) and i >= 1: e(lred[li]); li += 1
        while li < len(lred): e(lred[li]); li += 1
        e("s_nop 3")
        for x in range(4): e.lg(self.xwrite(4, x), ('Xw', 4))
        self.stamp(3); self.cstamp(1)
        e("s_nop 3")
        for t in range(5):
            if t in self.Z: e(f"v_accvgpr_read_b32 v{L+t}, a{LZ+4*t}")
        e("s_branch L_fin")

    def epi_slow(self):
        e = self.e
        e.label("L_epi_slow")
        e("s_nop 7\ns_nop 7")
        for t in range(5):
            if t not in self.Z:
                e(f"v_mov_b32 v1, v{L+t}\ns_nop 1\nv_permlane32_swap_b32 v1, v{L+t}\ns_nop 1\nv_add_f32 v{L+t}, v{L+t}, v1")
                e(f"v_mov_b32 v1, v{L+t}\ns_nop 1\nv_permlane16_swap_b32 v1, v{L+t}\ns_nop 1\nv_add_f32 v{L+t}, v{L+t}, v1")
            else:
                e(f"v_accvgpr_read_b32 v{L+t}, a{LZ+4*t}")
        self.epi_addrs()
        for t in range(5):
            for x in range(4): e(self.xwrite(t, x))
    def final(self):
        e = self.e
        e.label("L_fin")
        e.joined("final")
        for t in range(5): e(f"ds_write_b32 v{LW}, v{L+t} offset:{t*256}")
        e.wait(lg='all'); e("s_barrier")
        self.stamp(4)
        RINV = TMP
        LP = TMP + 10
        RB = S
        def xreads(t):
            for x in range(4):
                e.lg(f"ds_read_b128 {vr(Q+(t*4+x)*4,4)}, v{XR} offset:{XCH + (t*4+x)*1024}", ('Xr', t))
        for t in range(5): e.lg(f"ds_read_b32 v{LP+t}, v{LR} offset:{t*256}", ('l', 0))
        xreads(0); xreads(1)
        e.wait(lg=[('l', 0)])
        for t in range(5): e(f"v_add_f32 v{L+t}, v{L+t}, v{LP+t}")
        for t in range(5): e(f"v_rcp_f32 v{RINV+2*t}, v{L+t}")
        def stores(t):
            e.wait(lg=[('Rb', t)])
            for h in range(2):
                e.vm(f"buffer_store_dwordx4 {vr(RB+(t%2)*8+4*h,4)}, v{STO}, s[{sO}:{sO+3}], s{sT+6+h+2*(t%2)} offen {self.stflags}", ('St', t))
        for t in range(5):
            for h in range(2): e(f"s_mov_b32 s{sT+6+h+2*(t%2)}, {(t*2+h)*2048}")
            e.wait(lg=[('Xr', t)])
            if t + 2 < 5: xreads(t+2)
            rinv = vr(RINV+2*t, 2)
            for x in range(4):
                o = OK + (t*4+x)*4; r = Q + (t*4+x)*4
                e(f"v_pk_add_f32 {vr(o,2)}, {vr(o,2)}, {vr(r,2)}\nv_pk_add_f32 {vr(o+2,2)}, {vr(o+2,2)}, {vr(r+2,2)}")
            for x in range(4):
                o = OK + (t*4+x)*4
                e(f"v_pk_mul_f32 {vr(o,2)}, {vr(o,2)}, {rinv} op_sel_hi:[1,0]\nv_pk_mul_f32 {vr(o+2,2)}, {vr(o+2,2)}, {rinv} op_sel_hi:[1,0]")
            for x in range(4):
                o = OK + (t*4+x)*4
                e(f"v_cvt_pk_bf16_f32 v{o}, v{o}, v{o+1}\nv_cvt_pk_bf16_f32 v{o+1}, v{o+2}, v{o+3}")
            for x in range(4):
                o = OK + (t*4+x)*4
                e.lg(f"ds_write_b64 v{TW+x}, {vr(o,2)} offset:{t*2048}", ('Tw', t))
            if t >= 1: stores(t-1)
            e.lg(f"ds_read_b128 {vr(RB+(t%2)*8,4)}, v{TR} offset:{(t*2)*1024}", ('Rb', t))
            e.lg(f"ds_read_b64 {vr(RB+(t%2)*8+4,2)}, v{TR} offset:{(t*2+1)*1024+8}", ('Rb', t))
            e.lg(f"ds_read_b64 {vr(RB+(t%2)*8+6,2)}, v{TR} offset:{(t*2+1)*1024}", ('Rb', t))
        stores(4)
        self.stamp(5)
        if self.dbg:
            e("s_waitcnt vmcnt(0)")
            self.stamp(6)
            e("s_waitcnt lgkmcnt(0)")
            self.dump_stamps(8)
        e(f"s_cmp_lg_u32 s{sPASS}, 0\ns_cbranch_scc1 L_end")
        e(f"s_mov_b32 s{sT+4}, {f32bits(self.lo):#x}\ns_mov_b32 s{sT+5}, {f32bits(self.hi):#x}")
        e("s_mov_b64 s[56:57], 0")
        for tt in range(5):
            e(f"v_cmp_nle_f32 vcc, s{sT+4}, v{L+tt}\ns_or_b64 s[56:57], s[56:57], vcc")
            e(f"v_cmp_nge_f32 vcc, s{sT+5}, v{L+tt}\ns_or_b64 s[56:57], s[56:57], vcc")
        e("s_cmp_lg_u64 s[56:57], 0\ns_cselect_b32 s58, 1, 0")
        e(f"s_lshl_b32 s59, s{sW}, 2\ns_add_u32 s59, s59, {FLG}\nv_mov_b32 v1, s59\nv_mov_b32 v2, s58\nds_write_b32 v1, v2")
        e(f"s_waitcnt lgkmcnt(0)\ns_barrier\nv_mov_b32 v1, {FLG}\nds_read_b128 v[4:7], v1\ns_waitcnt lgkmcnt(0)")
        e("v_or_b32 v4, v4, v5\nv_or_b32 v6, v6, v7\nv_or_b32 v4, v4, v6\ns_nop 1\nv_readfirstlane_b32 s58, v4\ns_nop 3\ns_cmp_eq_u32 s58, 0\ns_cbranch_scc1 L_end")
        e("s_waitcnt vmcnt(0)\ns_barrier")

    def slow_path(self):
        e = self.e
        CI = 232
        mx = [252, 253, 254, 255, 34]
        e.label("L_slow")
        e.joined("slow")
        e(f"s_mov_b32 s{sPASS}, 1")
        for qt in range(5):
            e(f"s_add_u32 s{sT+2}, s{sQ0}, {qt*4096}\ns_add_u32 m0, s{sT+2}, {QB}\ns_nop 0")
            e(self.dma_text(sQ, sT+2, 0)); e(self.dma_text(sQ, sT+2, 1))
        self.addrs()
        e("s_waitcnt vmcnt(0)\ns_barrier")
        for qt in range(5): self.q_prep(qt)
        for t in range(5): e(f"v_mov_b32 v{mx[t]}, 0xff800000")
        e(f"s_mov_b32 s{sSOFF}, s{sW4K}")
        e.label("L_smax")
        e(f"s_barrier\ns_add_u32 m0, s{sW4K}, {KRING}\ns_nop 0")
        for i4 in range(4): e(self.dma_text(sK, sSOFF, i4))
        e("s_waitcnt vmcnt(0)\ns_barrier")
        for n in range(8): e(self.kread(0, 0, n))
        e("s_waitcnt lgkmcnt(0)")
        for t in range(5):
            for n in range(8): e(self.qk(t, 0, 0, n))
            e("s_nop 7\ns_nop 1")
            for k in range(0, 8, 2): e(f"v_max3_f32 v{mx[t]}, v{mx[t]}, v{S+k}, v{S+k+1}")
            e("s_nop 3")
        e(f"s_add_u32 s{sSOFF}, s{sSOFF}, 16384\ns_cmp_lt_u32 s{sSOFF}, 262144\ns_cbranch_scc1 L_smax")
        for t in range(5):
            m = mx[t]
            e(f"v_mov_b32 v1, v{m}\ns_nop 1\nv_permlane32_swap_b32 v1, v{m}\ns_nop 1\nv_max_f32 v{m}, v{m}, v1")
            e(f"v_mov_b32 v1, v{m}\ns_nop 1\nv_permlane16_swap_b32 v1, v{m}\ns_nop 1\nv_max_f32 v{m}, v{m}, v1")
        e(f"s_xor_b32 s{sT+1}, s{sW}, 1\ns_mul_i32 s{sT}, s{sW}, 1280\ns_mul_i32 s{sT+2}, s{sT+1}, 1280")
        e(f"v_lshlrev_b32 v4, 2, v{VLANE}\nv_add_u32 v4, {LXCH}, v4\nv_add_u32 v5, s{sT+2}, v4\nv_add_u32 v4, s{sT}, v4")
        e("s_barrier")
        for t in range(5): e(f"ds_write_b32 v4, v{mx[t]} offset:{t*256}")
        e("s_waitcnt lgkmcnt(0)\ns_barrier")
        for t in range(5): e(f"ds_read_b32 v{S+t}, v5 offset:{t*256}")
        e("s_waitcnt lgkmcnt(0)")
        for t in range(5):
            e(f"v_max_f32 v{mx[t]}, v{mx[t]}, v{S+t}")
            for r in range(4): e(f"v_sub_f32 v{CI+4*t+r}, 0, v{mx[t]}")
        for r in range(80): e(f"v_mov_b32 v{OK+r}, 0")
        for r in range(80): e(f"v_accvgpr_write_b32 a{OS+r}, 0")
        for r in range(20): e(f"v_accvgpr_write_b32 a{LZ+r}, 0")
        for t in range(5): e(f"v_mov_b32 v{L+t}, 0")
        e(f"s_mov_b32 s{sSOFF}, s{sW4K}")
        e.label("L_smain")
        e(f"s_barrier\ns_add_u32 m0, s{sW4K}, {KRING}\ns_nop 0")
        for i4 in range(4): e(self.dma_text(sK, sSOFF, i4))
        e(f"s_add_u32 m0, s{sW4K}, {VRING}\ns_nop 0")
        for i4 in range(4): e(self.dma_text(sV, sSOFF, i4))
        e("s_waitcnt vmcnt(0)\ns_barrier")
        for n in range(8): e(self.kread(0, 0, n))
        e("s_waitcnt lgkmcnt(0)")
        for n in range(16): e(self.vread(0, 0, n))
        e("s_waitcnt lgkmcnt(0)")
        for t in range(5):
            for n in range(8): e(self.qk(t, 0, 0, n, cinit=vr(CI+4*t, 4)))
            e("s_nop 7\ns_nop 1")
            for k in range(8): e(self.ex(0, k))
            e("s_nop 0")
            if t not in self.Z:
                for k in range(8): e(self.add(t, 0, k))
            for m in range(4): e(self.cvt(0, 0, m))
            e("s_nop 1")
            for d in range(8): e(self.pv(t, 0, 0, d))
            if t in self.Z: e(self.ones(t, 0))
            e("s_nop 3")
        e(f"s_add_u32 s{sSOFF}, s{sSOFF}, 16384\ns_cmp_lt_u32 s{sSOFF}, 262144\ns_cbranch_scc1 L_smain")
        e("s_barrier")

    def build(self, unroll=False):
        e = self.e
        self.setup()
        if self.fast: self.fast_path()
        else: e("s_branch L_slow")
        e.mark("epi")
        e("s_branch L_fin")
        self.slow_path()
        self.epi_slow()
        self.final()
        e("s_branch L_slow")
        e.label("L_end")
        e("s_endpgm")
        e.resolve()
        if self.fast:
            pre = e.texts(None, "it0"); its = [e.texts(f"it{k}", f"it{k+1}") for k in range(3)]
            post = e.texts("it3", None)
            assert its[0] == its[1] == its[2], "loop iterations differ"
            if unroll: body = pre + its[0] + its[1] + its[2] + post
            else:
                body = pre + [".p2align 6", "L_top:"] + its[0] + [f"s_cmp_lt_u32 s{sSOFF}, {17*16384}", "s_cbranch_scc1 L_top"] + post
        else: body = e.texts()
        txt = "\n".join(l if (l.endswith(":") or l.startswith(";") or l.startswith(".")) else "    " + l for l in body)
        hdr = HEADER + "; @launch grid=(256,1,1) block=(256,1,1) lds=163840\n"
        hdr += f""".amdgcn_target "amdgcn-amd-amdhsa--gfx950"
.text
.globl {KNAME}
.p2align 8
.type {KNAME},@function
{KNAME}:
"""
        ftr = f"""
.section .rodata,"a"
.p2align 6
.amdhsa_kernel {KNAME}
  .amdhsa_next_free_vgpr 512
  .amdhsa_next_free_sgpr 102
  .amdhsa_accum_offset 256
  .amdhsa_group_segment_fixed_size 0
  .amdhsa_kernarg_size 48
  .amdhsa_user_sgpr_count 2
  .amdhsa_user_sgpr_kernarg_segment_ptr 1
  .amdhsa_system_sgpr_workgroup_id_x 1
.end_amdhsa_kernel
"""
        return hdr + txt + "\n" + ftr

if __name__ == "__main__":
    ap = argparse.ArgumentParser()
    ap.add_argument("--slow", action="store_true")
    ap.add_argument("--Z", default="2,3")
    ap.add_argument("--lo", type=float, default=2.0**-6)
    ap.add_argument("--hi", type=float, default=2.0**100)
    ap.add_argument("--dbg", type=int, default=0)
    ap.add_argument("--st", default="sc1")
    ap.add_argument("--unroll", action="store_true")
    ap.add_argument("--probe", type=int, default=0)
    ap.add_argument("--probefl", default="")
    ap.add_argument("--ldq", default="")
    ap.add_argument("--ldkv", default="")
    ap.add_argument("-o", default="out.s")
    a = ap.parse_args()
    Z = tuple(int(x) for x in a.Z.split(",") if x != "")
    g = Gen(Z=Z, fast=not a.slow, lo=a.lo, hi=a.hi, dbg=a.dbg, st=a.st.replace("+", " "), opts=dict(ldq=a.ldq, ldkv=a.ldkv, probe=a.probe, probefl=a.probefl))
    open(a.o, "w").write(g.build(unroll=a.unroll))
```
